```python
import torch

def _softmax(x, axis=-1):
    return torch.softmax(x, dim=axis)
def _gelu(x):
    return torch.nn.functional.gelu(x, approximate="tanh")
def _silu(x):
    return torch.nn.functional.silu(x)
def _sigmoid(x):
    return torch.sigmoid(x)
def _layernorm(x, axis=-1, eps=1e-5):
    m = x.mean(dim=axis, keepdim=True)
    v = x.var(dim=axis, keepdim=True, unbiased=False)
    return (x - m) / torch.sqrt(v + eps)
def _scatter_add(tgt, idx, src, axis=0):
    return tgt.clone().index_add_(axis, idx, src)
def _segment_sum(src, seg, n):
    out = torch.zeros((n,) + src.shape[1:], dtype=src.dtype)
    return out.index_add_(0, seg, src)
def _pad(x, pw):
    flat = tuple(v for pair in reversed(pw) for v in pair)
    return torch.nn.functional.pad(x, flat)

kernel_name = 'parallel_sum__sliding_block_cached__glu_gated_swiglu__decode'

def setup_inputs():

    _w = (lambda a: (lambda t: t.to(torch.bfloat16) if t.is_floating_point() else t)(torch.as_tensor(a)))
    def _A_setup():
        B, Sq, D = 4, 1, 640
        Hq, Hkv, Sk, Dh = 32, 32, 8192, 192
        assert Hq % Hkv == 0, (Hq, Hkv)
        return {
            "x": _w((lambda *s: torch.randn(*s, dtype=torch.bfloat16) * 0.05)(B, Sq, D)),
            "k_cache": _w((lambda *s: torch.randn(*s, dtype=torch.bfloat16) * 1.6)(B, Hkv, Sk, Dh)),
            "v_cache": _w((lambda *s: torch.randn(*s, dtype=torch.bfloat16) * 0.8)(B, Hkv, Sk, Dh)),
            "wq": _w((lambda *s: torch.randn(*s, dtype=torch.bfloat16) * 1.6)(D, Hq * Dh) * (D ** -0.5)),
            "wo": _w((lambda *s: torch.randn(*s, dtype=torch.bfloat16) * 0.8)(Hq * Dh, D) * ((Hq * Dh) ** -0.5)),
        }
    _A_in = _A_setup()

    def _B_setup():
        B, S, D, F = 4, 1, 640, 1536
        return {
            "x": _w((lambda *s: torch.randn(*s, dtype=torch.bfloat16) * 0.05)(B, S, D)),
            "w1": _w((lambda *s: torch.randn(*s, dtype=torch.bfloat16) * 0.4)(D, F) * (2.0 / D) ** 0.5),
            "w3": _w((lambda *s: torch.randn(*s, dtype=torch.bfloat16) * 0.4)(D, F) * (2.0 / D) ** 0.5),
            "w2": _w((lambda *s: torch.randn(*s, dtype=torch.bfloat16) * 0.4)(F, D) * (2.0 / F) ** 0.5),
        }
    _B_in = _B_setup()

    return {
        "A_x": _A_in["x"],
        "A_k_cache": _A_in["k_cache"],
        "A_v_cache": _A_in["v_cache"],
        "A_wq": _A_in["wq"],
        "A_wo": _A_in["wo"],
        "B_x": _B_in["x"],
        "B_w1": _B_in["w1"],
        "B_w3": _B_in["w3"],
        "B_w2": _B_in["w2"],
    }

def reference(A_x, A_k_cache, A_v_cache, A_wq, A_wo, B_x, B_w1, B_w3, B_w2):
    def _A_ref(x, k_cache, v_cache, wq, wo):
        B, Sq, D = x.shape
        Hq, Dh = 32, 192
        Hkv, Sk = k_cache.shape[1], k_cache.shape[2]
        W = min(4096, max(256, Sk // 4))
        rep = Hq // Hkv
        q = (lambda x, *d: x.permute(*d))((x @ wq).reshape(B, Sq, Hq, Dh), 0, 2, 1, 3)
        k = (lambda x, n, axis: torch.repeat_interleave(x, n, dim=axis))(k_cache[:, :, Sk - W:, :], rep, axis=1)
        v = (lambda x, n, axis: torch.repeat_interleave(x, n, dim=axis))(v_cache[:, :, Sk - W:, :], rep, axis=1)
        scores = torch.einsum("bhqd,bhkd->bhqk", q, k) * (Dh ** -0.5)
        p = _softmax(scores, axis=-1)
        o = torch.einsum("bhqk,bhkd->bhqd", p, v)
        return (lambda x, *d: x.permute(*d))(o, 0, 2, 1, 3).reshape(B, Sq, Hq * Dh) @ wo

    def _B_ref(x, w1, w3, w2):
        gate = torch.einsum("bsd,df->bsf", x, w1)
        up = torch.einsum("bsd,df->bsf", x, w3)
        h = _silu(gate) * up
        out = torch.einsum("bsf,fd->bsd", h, w2)
        return out

    x = A_x
    xn = _layernorm(x, axis=-1)
    return x + _A_ref(xn, A_k_cache, A_v_cache, A_wq, A_wo) + _B_ref(xn, B_w1, B_w3, B_w2)
```

```python
import re

TRANS = ("v_exp_f32", "v_log_f32", "v_rcp_f32", "v_rsq_f32", "v_sqrt_f32", "v_sin_f32", "v_cos_f32")

def regs_of(op):
    op = op.strip()
    op = op.lstrip("-")
    if op.startswith("abs(") : op = op[4:-1]
    if op.startswith("|"): op = op.strip("|")
    m = re.fullmatch(r"([vsa])(\d+)", op)
    if m: return {(m.group(1), int(m.group(2)))}
    m = re.fullmatch(r"([vsa])\[(\d+):(\d+)\]", op)
    if m: return {(m.group(1), i) for i in range(int(m.group(2)), int(m.group(3)) + 1)}
    if op in ("vcc", "vcc_lo", "vcc_hi"): return {("x", "vcc")}
    if op in ("exec", "exec_lo", "exec_hi"): return {("x", "exec")}
    if op == "m0": return {("x", "m0")}
    return set()

def split_ops(rest):
    out = []; depth = 0; cur = ""
    for ch in rest:
        if ch in "[(": depth += 1
        if ch in "])": depth -= 1
        if ch == "," and depth == 0:
            out.append(cur.strip()); cur = ""
        else: cur += ch
    if cur.strip(): out.append(cur.strip())
    return out

class Asm:
    def __init__(self):
        self.lines = []
        self.pos = 0
        self.wr = {}
        self.mfma_c = {}
        self.st_data = {}
        self.nops = 0
    def raw(self, s): self.lines.append(s)
    def label(self, name):
        self.lines.append(name + ":")
    def comment(self, s): self.lines.append("  ; " + s)
    def __call__(self, text):
        for line in text.split("\n"):
            line = line.split(";")[0].strip()
            if not line: continue
            if line.endswith(":"): self.label(line[:-1]); continue
            self.ins(line)
    def ins(self, line):
        parts = line.split(None, 1)
        mn = parts[0]; rest = parts[1] if len(parts) > 1 else ""
        ops = split_ops(rest)
        mods = ""
        if ops:
            toks = ops[-1].split(None, 1)
            if len(toks) > 1 and not ops[-1].startswith(("vmcnt", "lgkmcnt", "hwreg")):
                ops[-1] = toks[0]; mods = toks[1]
        dpp = any(k in mods for k in ("quad_perm", "row_ror", "row_shl", "row_shr", "row_mirror", "row_half_mirror", "row_bcast", "row_newbcast", "wave_"))
        dst = set(); src = set(); kind = None; srcC = set()
        isvalu = mn.startswith("v_"); ismfma = mn.startswith("v_mfma")
        isvmem = mn.startswith(("buffer_", "global_")); isds = mn.startswith("ds_")
        if ismfma:
            dst = regs_of(ops[0]); src = regs_of(ops[1]) | regs_of(ops[2]); srcC = regs_of(ops[3]); kind = "mfma"
        elif mn.startswith("v_permlane") and "swap" in mn:
            dst = regs_of(ops[0]) | regs_of(ops[1]); src = set(dst); kind = "valu"
        elif isvalu:
            dst = regs_of(ops[0])
            k = 1
            if mn.startswith(("v_add_co", "v_addc_co", "v_sub_co")): dst |= regs_of(ops[1]); k = 2
            for o in ops[k:]: src |= regs_of(o)
            if mn.startswith(("v_fmac", "v_dot2c", "v_writelane")) or dpp: src |= regs_of(ops[0]) if (mn.startswith(("v_fmac", "v_dot2c", "v_writelane")) ) else set()
            kind = "dot" if mn.startswith("v_dot") else ("trans" if mn.replace("_e32","").replace("_e64","") in TRANS else "valu")
        elif isvmem:
            lds = " lds" in (" " + mods) or mods.startswith("lds")
            if "load" in mn and not lds:
                dst = regs_of(ops[0]); [src.update(regs_of(o)) for o in ops[1:]]
            else:
                [src.update(regs_of(o)) for o in ops]
                if lds: src.add(("x", "m0"))
            kind = "vmem"
        elif isds:
            if mn.startswith(("ds_read", "ds_bpermute", "ds_swizzle")) or "_rtn" in mn:
                dst = regs_of(ops[0]); [src.update(regs_of(o)) for o in ops[1:]]
            else:
                [src.update(regs_of(o)) for o in ops]
            kind = "ds"
        elif mn.startswith("s_"):
            if mn.startswith(("s_cmp", "s_cbranch", "s_branch", "s_waitcnt", "s_barrier", "s_nop", "s_sleep", "s_endpgm", "s_setprio", "s_bitcmp")):
                [src.update(regs_of(o)) for o in ops]
            else:
                dst = regs_of(ops[0]); [src.update(regs_of(o)) for o in ops[1:]]
                if "saveexec" in mn: dst.add(("x", "exec"))
            kind = "salu"
        need = 0
        def since(r): return self.pos - self.wr[r][1]
        def req(r, n):
            nonlocal need
            need = max(need, n - since(r))
        allread = src | srcC
        for r in allread:
            if r not in self.wr: continue
            pk = self.wr[r][0]
            pvalu = pk in ("valu", "dot", "trans")
            if r[0] in "sx" and pvalu:
                if isvmem: req(r, 5)
                elif isvalu:
                    if mn.startswith(("v_readlane", "v_writelane")) : req(r, 4)
                    else: req(r, 2)
                else: req(r, 1)
            if r == ("x", "m0") and pk == "salu" and (isvmem or isvalu or isds): req(r, 1)
            if r[0] in "va":
                if pvalu:
                    if ismfma: req(r, 2)
                    if dpp or mn.startswith("v_permlane"): req(r, 2)
                    if mn.startswith(("v_readlane", "v_readfirstlane")): req(r, 1)
                if pk == "trans" and kind != "trans": req(r, 1)
                if pk == "dot":
                    same = self.wr[r][2] == mn
                    if not (same and r in dst): req(r, 3)
                if pk == "mfma":
                    passes = self.wr[r][2]
                    if ismfma:
                        if r in srcC and srcC == self.wr[r][3] and r not in src: pass
                        elif r in src: req(r, 8 if passes == 4 else 12)
                        else: req(r, 6 if passes == 4 else 10)
                    else: req(r, 8 if passes == 4 else 12)
        for r in dst:
            if r in self.wr and r[0] in "va":
                pk = self.wr[r][0]
                if pk == "mfma" and not ismfma: req(r, 8 if self.wr[r][2] == 4 else 12)
                if pk == "mfma" and ismfma and not (srcC == self.wr[r][3]): req(r, 8 if self.wr[r][2] == 4 else 12)
                if pk == "dot" and self.wr[r][2] != mn: req(r, 3)
            if r in self.mfma_c and not ismfma:
                need = max(need, self.mfma_c[r][1] - (self.pos - self.mfma_c[r][0]))
            if r in self.st_data:
                need = max(need, 2 - (self.pos - self.st_data[r]))
        if dpp and ("x", "exec") in self.wr: need = max(need, 2 - since(("x", "exec")))
        while need > 0:
            n = min(need, 16)
            self.lines.append(f"  s_nop {n-1}"); self.pos += n; need -= n; self.nops += 1
        self.lines.append("  " + line)
        st = 1
        if mn == "s_nop": st = int(ops[0], 0) + 1
        self.pos += st
        for r in dst:
            if kind == "mfma":
                passes = 4 if "16x16" in mn else 8
                self.wr[r] = ("mfma", self.pos, passes, frozenset(dst))
            elif kind == "dot": self.wr[r] = ("dot", self.pos, mn)
            else: self.wr[r] = (kind, self.pos)
        if ismfma:
            for r in srcC: self.mfma_c[r] = (self.pos, 3 if "16x16" in mn else 7)
        if isvmem and "store" in mn and ("x4" in mn or "x3" in mn):
            for r in regs_of(ops[0]): self.st_data[r] = self.pos
    def text(self): return "\n".join(self.lines) + "\n"
```

```python
import sys; sys.path.insert(0, "work")
from asmlib import Asm
NAME = "parallel_sum__sliding_block_cached__glu_gated_swiglu__decode"

WS_PART = 0
WS_REC = 0xC0000
WS_YP = 0x100000
WS_STAMP = 0x200000
WS_SIZE = 0x400000
L_Q = 0; L_M = 384; L_CNT = 416; L_OV = 512; OVS = 528
L_OP = 2688; OPS = 896
L_WO = 17024
L_T = 55424
LDS_SIZE = L_T + 3 * 16384
sX, sK, sV, sWQ, sWO, sBX, sW1, sW3, sW2, sOUT, sDBG, sWS = 4, 6, 8, 10, 12, 14, 16, 18, 20, 22, 24, 26
R_K, R_V, R_WS, R_WO, R_W2, R_X, R_OUT, R_DBG, R_W = 28, 32, 36, 40, 44, 48, 52, 56, 72
sW, sG, sJ, sHL, sJJ, sH, sB, sHALF = 60, 61, 62, 63, 64, 65, 66, 67
sHI = 68
sT0, sT1, sT2 = 69, 70, 71
sT3, sT4, sT5, sT6 = 76, 77, 78, 79
sSPIN = 3
ST0 = 80
vKV = 1
Q = 8; S = 20; MK = 36; AT = 40; D = 48; R = 60; P = 64
LOG2E = 0x3fb8aa3b
SCALE = 0x3d93cd3a
import numpy as np
assert np.float32(192 ** -0.5).view(np.uint32) == SCALE, hex(np.float32(192 ** -0.5).view(np.uint32))
INV640 = int(np.float32(1.0 / 640).view(np.uint32))
EPS = int(np.float32(1e-5).view(np.uint32))
DPPM = "row_mask:0xf bank_mask:0xf"
SPINMAX = 200000

def srd(r): return f"s[{r}:{r+3}]"
def vr(a, n): return f"v[{a}:{a+n-1}]"

def gen(stamp=False):
    A = Asm()
    A.raw(f"; @launch grid=(256,1,1) block=(512,1,1) lds={LDS_SIZE}")
    A.raw('.amdgcn_target "amdgcn-amd-amdhsa--gfx950"'); A.raw(".text"); A.raw(f".globl {NAME}_kernel"); A.raw(".p2align 8")
    A.raw(f".type {NAME}_kernel,@function"); A.raw(f"{NAME}_kernel:")
    def st(i):
        if stamp: A(f"s_memrealtime s[{ST0+2*i}:{ST0+2*i+1}]")
    def setexec(lo, hi):
        A(f"s_mov_b32 exec_lo, {lo:#x}"); A(f"s_mov_b32 exec_hi, {hi:#x}")
    def fullexec(): A("s_mov_b64 exec, -1")
    def xlane(op, r, t, ror4=False):
        A(f"{op}_dpp v{r}, v{r}, v{r} row_ror:8 {DPPM}")
        if ror4: A(f"{op}_dpp v{r}, v{r}, v{r} row_ror:4 {DPPM}")
        A(f"v_mov_b32 v{t}, v{r}"); A(f"v_permlane16_swap_b32 v{r}, v{t}"); A(f"{op} v{r}, v{r}, v{t}")
        A(f"v_mov_b32 v{t}, v{r}"); A(f"v_permlane32_swap_b32 v{r}, v{t}"); A(f"{op} v{r}, v{r}, v{t}")
    def rnd(r, t):
        A(f"v_cvt_pk_bf16_f32 v{t}, v{r}, v{r}"); A(f"v_lshlrev_b32 v{r}, 16, v{t}")
    def spin_check(lbl, sleep):
        if sleep: A(f"s_sleep {sleep}")
        A(f"s_add_u32 s{sSPIN}, s{sSPIN}, 1"); A(f"s_cmp_lt_u32 s{sSPIN}, {SPINMAX}"); A(f"s_cbranch_scc1 {lbl}"); A("s_branch L_fin")

    A("s_cmp_ge_u32 s2, 256"); A("s_cbranch_scc1 L_end")
    if stamp:
        for i in range(10): A(f"s_mov_b64 s[{ST0+2*i}:{ST0+2*i+1}], 0")
    st(0)
    A("s_load_dwordx16 s[4:19], s[0:1], 0")
    A("s_load_dwordx8 s[20:27], s[0:1], 64")
    A(f"""
      v_lshrrev_b32 v2, 6, v0
      v_and_b32 v0, 63, v0
      v_readfirstlane_b32 s{sW}, v2
      v_mov_b32 v2, 0
      v_mov_b32 v3, 0
      v_mov_b32 v4, {L_CNT}
      ds_write_b64 v4, v[2:3]
      s_mov_b32 s{sSPIN}, 0
      s_and_b32 s{sG}, s2, 7
      s_lshr_b32 s{sJ}, s2, 3
      s_lshr_b32 s{sHL}, s{sJ}, 3
      s_and_b32 s{sJJ}, s{sJ}, 7
      s_lshl_b32 s{sH}, s{sG}, 2
      s_add_u32 s{sH}, s{sH}, s{sHL}
      s_lshr_b32 s{sB}, s{sJJ}, 1
      s_and_b32 s{sHALF}, s{sJJ}, 1
      s_mov_b32 s{sHI}, 0xffff0000
      s_lshl_b32 s{sT0}, s{sB}, 5
      s_add_u32 s{sT0}, s{sT0}, s{sH}
      s_mul_i32 s{sT0}, s{sT0}, 3145728
      s_mul_i32 s{sT1}, s{sHALF}, 393216
      s_add_u32 s{sT0}, s{sT0}, s{sT1}
      s_mul_i32 s{sT1}, s{sW}, 49152
      s_add_u32 s{sT0}, s{sT0}, s{sT1}
      s_add_u32 s{sT0}, s{sT0}, 2359296
      s_mul_i32 s{sT1}, s{sH}, 245760
      s_mul_i32 s{sT2}, s{sJJ}, 160
      s_add_u32 s{sT1}, s{sT1}, s{sT2}
      s_mul_i32 s{sT3}, s{sH}, 61440
      s_add_u32 s{sT3}, s{sT3}, s{sT2}
      v_lshrrev_b32 v5, 3, v0
      v_and_b32 v6, 7, v0
      v_mul_u32_u24 v{vKV}, 384, v5
      v_lshl_add_u32 v{vKV}, v6, 4, v{vKV}
      s_mov_b32 s{R_K+2}, 49152
      s_mov_b32 s{R_K+3}, 0x20000
      s_mov_b32 s{R_V+2}, 49152
      s_mov_b32 s{R_V+3}, 0x20000
      s_mov_b32 s{R_WS+2}, {WS_SIZE}
      s_mov_b32 s{R_WS+3}, 0x20000
      s_mov_b32 s{R_WO+2}, {191*1280+160}
      s_mov_b32 s{R_WO+3}, 0x20000
      s_mov_b32 s{R_W2+2}, {47*1280+160}
      s_mov_b32 s{R_W2+3}, 0x20000
      s_mov_b32 s{R_X+2}, 5120
      s_mov_b32 s{R_X+3}, 0x20000
      s_mov_b32 s{R_OUT+2}, 5120
      s_mov_b32 s{R_OUT+3}, 0x20000
      s_mov_b32 s{R_DBG+2}, 256
      s_mov_b32 s{R_DBG+3}, 0x20000
      s_mov_b32 s{R_W+3}, 0x20000
      s_waitcnt lgkmcnt(0)
      s_barrier
      s_add_u32 s{R_K}, s{sK}, s{sT0}
      s_addc_u32 s{R_K+1}, s{sK+1}, 0
      s_add_u32 s{R_V}, s{sV}, s{sT0}
      s_addc_u32 s{R_V+1}, s{sV+1}, 0
      s_add_u32 s{R_WO}, s{sWO}, s{sT1}
      s_addc_u32 s{R_WO+1}, s{sWO+1}, 0
      s_add_u32 s{R_W2}, s{sW2}, s{sT3}
      s_addc_u32 s{R_W2+1}, s{sW2+1}, 0
      s_mov_b64 s[{R_WS}:{R_WS+1}], s[{sWS}:{sWS+1}]
      s_mov_b64 s[{R_X}:{R_X+1}], s[{sX}:{sX+1}]
      s_mov_b64 s[{R_OUT}:{R_OUT+1}], s[{sOUT}:{sOUT+1}]
      s_mov_b64 s[{R_DBG}:{R_DBG+1}], s[{sDBG}:{sDBG+1}]
      s_cmp_gt_u32 s{sW}, 3
      s_cbranch_scc1 L_issue
      s_cmp_eq_u32 s{sW}, 3
      s_cbranch_scc1 L_svc
    """)
    XS = P; XO = P + 20; F = P + 36; AW = P + 76; DD = P + 140; T = P + 156
    sU, sRB, sSTR = sT3, sT4, sT5
    A(f"""
      s_mul_i32 s{sT0}, s{sJ}, 3
      s_add_u32 s{sT0}, s{sT0}, s{sW}
      s_mul_i32 s{sU}, s{sT0}, 205
      s_lshr_b32 s{sU}, s{sU}, 10
      s_mul_i32 s{sT1}, s{sU}, 5
      s_sub_u32 s{sRB}, s{sT0}, s{sT1}
      s_cmp_ge_u32 s{sU}, 18
      s_cbranch_scc1 L_signal
      v_and_b32 v2, 3, v0
      v_mul_u32_u24 v2, 1280, v2
      v_lshrrev_b32 v3, 2, v0
      v_lshl_add_u32 v3, v3, 4, v2
      v_lshrrev_b32 v4, 4, v0
      v_lshl_add_u32 v7, v4, 4, v2
      s_lshl_b32 s{sT0}, s{sRB}, 8
    """)
    for t in range(5): A(f"buffer_load_dwordx4 {vr(XS+4*t,4)}, v3, {srd(R_X)}, 0 offen offset:{t*256} nt")
    for s in range(4): A(f"buffer_load_dwordx4 {vr(XO+4*s,4)}, v7, {srd(R_X)}, s{sT0} offen offset:{s*64} nt")
    A(f"""
      s_cmp_ge_u32 s{sU}, 15
      s_cselect_b64 s[{R_W}:{R_W+1}], s[{sW3}:{sW3+1}], s[{sW1}:{sW1+1}]
      s_cselect_b32 s{sT0}, 15, 12
      s_sub_u32 s{sT0}, s{sU}, s{sT0}
      s_mul_i32 s{sT1}, s{sG}, 3
      s_add_u32 s{sT0}, s{sT0}, s{sT1}
      s_mul_i32 s{sT1}, s{sG}, 12
      s_add_u32 s{sT1}, s{sT1}, s{sU}
      s_cmp_lt_u32 s{sU}, 12
      s_cselect_b64 s[{R_W}:{R_W+1}], s[{sWQ}:{sWQ+1}], s[{R_W}:{R_W+1}]
      s_cselect_b32 s{sT0}, s{sT1}, s{sT0}
      s_cselect_b32 s{sSTR}, 4, 1
      s_mul_i32 s{sSTR}, s{sSTR}, 3072
      s_lshl_b32 s{sT0}, s{sT0}, 7
      s_mul_i32 s{sT1}, s{sRB}, s{sSTR}
      s_lshl_b32 s{sT1}, s{sT1}, 7
      s_add_u32 s{sT0}, s{sT0}, s{sT1}
      s_add_u32 s{R_W}, s{R_W}, s{sT0}
      s_addc_u32 s{R_W+1}, s{R_W+1}, 0
      s_mul_i32 s{R_W+2}, s{sSTR}, 127
      s_add_u32 s{R_W+2}, s{R_W+2}, 128
      v_lshlrev_b32 v6, 4, v6
      v_mad_u32_u24 v5, v5, s{sSTR}, v6
      s_lshl_b32 s{sSTR}, s{sSTR}, 3
      s_lshl_b32 s{sT1}, s{sW}, 14
      s_add_u32 s{sT1}, s{sT1}, {L_T}
      s_mov_b32 m0, s{sT1}
      s_mov_b32 s{sT0}, 0
    """)
    for n in range(16):
        A(f"buffer_load_dwordx4 v5, {srd(R_W)}, s{sT0} offen nt lds")
        if n < 15:
            A(f"s_add_u32 m0, m0, 1024"); A(f"s_add_u32 s{sT0}, s{sT0}, s{sSTR}")
    A(f"""
      v_bfe_u32 v2, v0, 2, 2
      v_lshl_add_u32 v2, v4, 3, v2
      v_lshlrev_b32 v2, 7, v2
      v_and_b32 v3, 3, v0
      v_lshl_add_u32 v2, v3, 3, v2
      v_add_u32 v2, s{sT1}, v2
    """)
    A(f"""
      v_mul_u32_u24 v3, 23040, v3
      v_bfe_u32 v6, v0, 2, 2
      v_lshl_add_u32 v3, v6, 6, v3
      v_lshl_add_u32 v3, v4, 4, v3
      s_mul_i32 s{sT0}, s{sG}, 92160
      s_mul_i32 s{sT1}, s{sRB}, 4608
      s_add_u32 s{sT0}, s{sT0}, s{sT1}
      s_lshl_b32 s{sT1}, s{sU}, 8
      s_add_u32 s{sT6}, s{sT0}, s{sT1}
      s_waitcnt vmcnt(20)
    """)
    st(1)
    for k in range(20):
        A(f"v_lshlrev_b32 v{F+2*k}, 16, v{XS+k}"); A(f"v_and_b32 v{F+2*k+1}, s{sHI}, v{XS+k}")
    A(f"v_pk_add_f32 {vr(T,2)}, {vr(F,2)}, {vr(F+2,2)}"); A(f"v_pk_add_f32 {vr(T+2,2)}, {vr(F+4,2)}, {vr(F+6,2)}")
    for k in range(4, 20):
        a = T + 2 * (k & 1); A(f"v_pk_add_f32 {vr(a,2)}, {vr(a,2)}, {vr(F+2*k,2)}")
    A(f"v_pk_add_f32 {vr(T,2)}, {vr(T,2)}, {vr(T+2,2)}"); A(f"v_add_f32 v{T}, v{T}, v{T+1}")
    xlane("v_add_f32", T, T + 1, ror4=True)
    A(f"v_mul_f32 v{T}, {INV640:#x}, v{T}")
    for k in range(20):
        A(f"v_pk_add_f32 {vr(F+2*k,2)}, {vr(F+2*k,2)}, {vr(T,2)} op_sel_hi:[1,0] neg_lo:[0,1] neg_hi:[0,1]")
    A(f"v_pk_mul_f32 {vr(T+2,2)}, {vr(F,2)}, {vr(F,2)}"); A(f"v_pk_mul_f32 {vr(T+4,2)}, {vr(F+2,2)}, {vr(F+2,2)}")
    for k in range(2, 20):
        a = T + 2 + 2 * (k & 1); A(f"v_pk_fma_f32 {vr(a,2)}, {vr(F+2*k,2)}, {vr(F+2*k,2)}, {vr(a,2)}")
    A(f"v_pk_add_f32 {vr(T+2,2)}, {vr(T+2,2)}, {vr(T+4,2)}"); A(f"v_add_f32 v{T+2}, v{T+2}, v{T+3}")
    xlane("v_add_f32", T + 2, T + 3, ror4=True)
    A(f"v_mul_f32 v{T+2}, {INV640:#x}, v{T+2}")
    rnd(T, T + 1)
    rnd(T + 2, T + 3); A(f"v_add_f32 v{T+2}, {EPS:#x}, v{T+2}"); rnd(T + 2, T + 3)
    A(f"v_sqrt_f32 v{T+2}, v{T+2}"); rnd(T + 2, T + 3); A(f"v_rcp_f32 v{T+2}, v{T+2}")
    A("s_waitcnt vmcnt(16)")
    for k in range(16):
        A(f"v_lshlrev_b32 v{F+2*k}, 16, v{XO+k}"); A(f"v_and_b32 v{F+2*k+1}, s{sHI}, v{XO+k}")
    for k in range(16):
        A(f"v_pk_add_f32 {vr(F+2*k,2)}, {vr(F+2*k,2)}, {vr(T,2)} op_sel_hi:[1,0] neg_lo:[0,1] neg_hi:[0,1]")
    for k in range(16): A(f"v_cvt_pk_bf16_f32 v{XO+k}, v{F+2*k}, v{F+2*k+1}")
    for k in range(16):
        A(f"v_lshlrev_b32 v{F+2*k}, 16, v{XO+k}"); A(f"v_and_b32 v{F+2*k+1}, s{sHI}, v{XO+k}")
    for k in range(16):
        A(f"v_pk_mul_f32 {vr(F+2*k,2)}, {vr(F+2*k,2)}, {vr(T+2,2)} op_sel_hi:[1,0]")
    for k in range(16): A(f"v_cvt_pk_bf16_f32 v{XO+k}, v{F+2*k}, v{F+2*k+1}")
    st(2)
    for s in range(4):
        A(f"s_waitcnt vmcnt({12 - 4*s})")
        for t in range(4):
            for hh in range(2):
                r = AW + (s * 4 + t) * 4 + 2 * hh
                A(f"ds_read_b64_tr_b16 {vr(r,2)}, v2 offset:{s*4096 + hh*512 + t*32}")
    for s in range(4):
        A(f"s_waitcnt lgkmcnt({min(15, 8*(3-s))})" if s >= 2 else ("s_waitcnt lgkmcnt(15)" if s == 0 else "s_nop 0"))
        for t in range(4):
            c = "0" if s == 0 else vr(DD + 4*t, 4)
            A(f"v_mfma_f32_16x16x32_bf16 {vr(DD+4*t,4)}, {vr(AW+(s*4+t)*4,4)}, {vr(XO+4*s,4)}, {c}")
    for t in range(1, 4):
        m = 0x000f000f << (4 * t)
        setexec(m, m)
        for r in range(4): A(f"v_mov_b32 v{DD+r}, v{DD+4*t+r}")
    fullexec()
    A(f"buffer_store_dwordx4 {vr(DD,4)}, v3, {srd(R_WS)}, s{sT6} offen sc1")
    st(3)
    A.label("L_signal")
    A(f"""
      s_waitcnt vmcnt(0)
      s_mov_b64 exec, 1
      v_mov_b32 v2, {L_CNT}
      v_mov_b32 v3, 1
      ds_add_rtn_u32 v4, v2, v3
      s_waitcnt lgkmcnt(0)
      v_readfirstlane_b32 s{sT0}, v4
      s_cmp_lg_u32 s{sT0}, 3
      s_cbranch_scc1 L_sigdone
      s_lshl_b32 s{sT0}, s{sG}, 5
      v_mov_b32 v2, s{sT0}
      buffer_atomic_add v3, v2, {srd(R_DBG)}, 0 offen sc1
    """)
    A.label("L_sigdone")
    fullexec()
    st(4)
    A(f"s_cmp_eq_u32 s{sW}, 3"); A("s_cbranch_scc1 L_poll1_pre"); A("s_branch L_issue")
    A.label("L_svc")
    A(f"""
      v_mov_b32 v{P}, -1
      v_mov_b32 v{P+1}, -1
      v_mov_b32 v{P+2}, -1
      v_mov_b32 v{P+3}, -1
      v_lshlrev_b32 v2, 4, v0
      s_lshl_b32 s{sT0}, s{sH}, 3
      s_add_u32 s{sT0}, s{sT0}, s{sJJ}
      s_lshl_b32 s{sT0}, s{sT0}, 10
      s_add_u32 s{sT0}, s{sT0}, {WS_REC}
      buffer_store_dwordx4 {vr(P,4)}, v2, {srd(R_WS)}, s{sT0} offen sc1
      v_lshlrev_b32 v3, 12, v5
      v_lshl_add_u32 v3, v6, 4, v3
      s_mul_i32 s{sT0}, s{sJJ}, 40960
      s_lshl_b32 s{sT1}, s{sH}, 7
      s_add_u32 s{sT0}, s{sT0}, s{sT1}
      s_add_u32 s{sT0}, s{sT0}, {WS_YP}
      buffer_store_dwordx4 {vr(P,4)}, v3, {srd(R_WS)}, s{sT0} offen sc1
      s_add_u32 s{sT0}, s{sT0}, 32768
      s_mov_b64 exec, 0xffff
      buffer_store_dwordx4 {vr(P,4)}, v3, {srd(R_WS)}, s{sT0} offen sc1
      s_mov_b64 exec, 0xff
      v_mov_b32 v{P+4}, 0
      v_mov_b32 v{P+5}, 0
      v_mov_b32 v{P+6}, 0
      v_mov_b32 v{P+7}, 0
      v_lshrrev_b32 v2, 1, v0
      v_mul_u32_u24 v2, {OVS}, v2
      v_and_b32 v3, 1, v0
      v_lshl_add_u32 v2, v3, 4, v2
      ds_write_b128 v2, {vr(P+4,4)} offset:{L_OV+480}
      s_mov_b64 exec, -1
      s_branch L_signal
    """)
    A.label("L_poll1_pre")
    A(f"""
      s_lshl_b32 s{sT0}, s{sHL}, 1
      s_add_u32 s{sT0}, s{sT0}, s{sHALF}
      s_mul_i32 s{sT0}, s{sT0}, 96
      s_mul_i32 s{sT1}, s{sHL}, 768
      v_lshlrev_b32 v3, 4, v0
      v_add_u32 v4, s{sT1}, v3
      s_add_u32 s{sT1}, s{sT0}, {3072 - 48*16}
      s_add_u32 s{sT0}, s{sT0}, {3840 - 54*16}
      s_mov_b32 exec_lo, 0
      s_mov_b32 exec_hi, 0x003f0000
      v_add_u32 v4, s{sT1}, v3
      s_mov_b32 exec_hi, 0x0fc00000
      v_add_u32 v4, s{sT0}, v3
      s_lshl_b32 s{sT0}, s{sG}, 2
      s_add_u32 s{sT0}, s{sT0}, s{sB}
      s_mul_i32 s{sT0}, s{sT0}, 23040
      s_mov_b64 exec, 0xff
      v_lshlrev_b32 v2, 5, v0
    """)
    A.label("L_poll1")
    A(f"""
      buffer_load_dword v3, v2, {srd(R_DBG)}, 0 offen sc1
      s_waitcnt vmcnt(0)
      v_cmp_ne_u32 vcc, 32, v3
      s_cmp_eq_u64 vcc, 0
      s_cbranch_scc1 L_poll1_ok
    """)
    spin_check("L_poll1", 4)
    A.label("L_poll1_ok")
    st(5)
    G0 = P
    setexec(0xffffffff, 0x0fffffff)
    for rb in range(5):
        A(f"buffer_load_dwordx4 {vr(G0+4*rb,4)}, v4, {srd(R_WS)}, s{sT0} offen sc1")
        if rb < 4: A(f"s_add_u32 s{sT0}, s{sT0}, 4608")
    fullexec()
    A("v_lshlrev_b32 v2, 3, v0")
    for rb in range(1, 5):
        A(f"s_waitcnt vmcnt({4 - rb})")
        A(f"v_pk_add_f32 {vr(G0,2)}, {vr(G0,2)}, {vr(G0+4*rb,2)}"); A(f"v_pk_add_f32 {vr(G0+2,2)}, {vr(G0+2,2)}, {vr(G0+4*rb+2,2)}")
    A(f"v_cvt_pk_bf16_f32 v{R}, v{G0}, v{G0+1}"); A(f"v_cvt_pk_bf16_f32 v{R+1}, v{G0+2}, v{G0+3}")
    setexec(0xffffffff, 0x0000ffff)
    A(f"ds_write_b64 v2, {vr(R,2)} offset:{L_Q}")
    fullexec()
    A("s_waitcnt lgkmcnt(0)")
    st(6)
    A("s_barrier")
    A.label("L_issue")
    A(f"""
      v_mul_u32_u24 v2, 26, v0
      v_lshrrev_b32 v2, 8, v2
      v_mul_u32_u24 v3, 10, v2
      v_sub_u32 v3, v0, v3
      v_mul_u32_u24 v2, 1280, v2
      v_lshl_add_u32 v2, v3, 4, v2
      s_mul_i32 s{sT0}, s{sW}, 30720
      s_mul_i32 s{sT1}, s{sW}, 3840
      s_add_u32 m0, s{sT1}, {L_WO}
      s_mov_b32 exec_hi, 0x0fffffff
    """)
    for i in range(4):
        A(f"buffer_load_dwordx4 v2, {srd(R_WO)}, s{sT0} offen nt lds")
        if i < 3: A(f"s_add_u32 m0, m0, 960"); A(f"s_add_u32 s{sT0}, s{sT0}, 7680")
    A(f"""
      s_mul_i32 s{sT0}, s{sW}, 7680
      s_mul_i32 s{sT1}, s{sW}, 960
      s_add_u32 m0, s{sT1}, {L_WO + 192*160}
      buffer_load_dwordx4 v2, {srd(R_W2)}, s{sT0} offen nt lds
      s_mov_b32 exec_hi, -1
    """)
    def issue(r):
        for n in range(48):
            i, jx = divmod(n, 3)
            if n % 6 == 0: A(f"s_mov_b32 s{sT0}, {i*3072}")
            A(f"buffer_load_dwordx4 {vr(P+4*n,4)}, v{vKV}, {srd(r)}, s{sT0} offen offset:{(i%2)*3072 + jx*128} nt")
    issue(R_K)
    A(f"s_cmp_eq_u32 s{sW}, 3"); A("s_cbranch_scc1 L_hcalc")
    if stamp: st(5)
    A("s_barrier")
    if stamp: st(6)
    A("s_branch L_kcomp")
    A.label("L_hcalc")
    g = AT; u = AT + 4; e = D
    A(f"v_lshlrev_b32 v{g}, 16, v{R}"); A(f"v_and_b32 v{g+1}, s{sHI}, v{R}")
    A(f"v_lshlrev_b32 v{g+2}, 16, v{R+1}"); A(f"v_and_b32 v{g+3}, s{sHI}, v{R+1}")
    for r in range(4): A(f"v_mul_f32 v{e+r}, {LOG2E ^ 0x80000000:#x}, v{g+r}")
    for r in range(4): A(f"v_mov_b32_dpp v{u+r}, v{g+r} row_shl:6 {DPPM}")
    for r in range(4): A(f"v_exp_f32 v{e+r}, v{e+r}")
    for r in range(4): A(f"v_add_f32 v{e+r}, 1.0, v{e+r}")
    for r in range(4): A(f"v_rcp_f32 v{e+r}, v{e+r}")
    for r in range(4): A(f"v_mul_f32 v{e+r}, v{e+r}, v{g+r}")
    A(f"v_cvt_pk_bf16_f32 v{g}, v{e}, v{e+1}"); A(f"v_cvt_pk_bf16_f32 v{g+1}, v{e+2}, v{e+3}")
    A(f"v_lshlrev_b32 v{e}, 16, v{g}"); A(f"v_and_b32 v{e+1}, s{sHI}, v{g}")
    A(f"v_lshlrev_b32 v{e+2}, 16, v{g+1}"); A(f"v_and_b32 v{e+3}, s{sHI}, v{g+1}")
    for r in range(4): A(f"v_mul_f32 v{R+r}, v{e+r}, v{u+r}")
    A.label("L_kcomp")
    A(f"v_and_b32 v6, 7, v0"); A(f"v_lshlrev_b32 v2, 4, v6")
    for jx in range(3): A(f"ds_read_b128 {vr(Q+4*jx,4)}, v2 offset:{L_Q + jx*128}")
    for i in range(16): A(f"v_mov_b32 v{S+i}, 0")
    A(f"v_and_b32 v3, 1, v0"); A(f"v_lshlrev_b32 v3, 4, v3"); A(f"v_mov_b32 v4, 0xffff"); A(f"v_lshlrev_b32 v3, v3, v4")
    A(f"v_lshrrev_b32 v4, 1, v6")
    for jx in range(4):
        A(f"v_cmp_eq_u32 vcc, {jx}, v4"); A(f"v_cndmask_b32 v{MK+jx}, 0, v3, vcc")
    A("s_waitcnt lgkmcnt(0)")
    for k in range(8):
        A(f"s_waitcnt vmcnt({42 - 6*k})")
        for m in range(12):
            for z in range(2):
                i = 2 * k + z
                A(f"v_dot2c_f32_bf16 v{S+i}, v{P + 12*i + m}, v{Q+m}")
    for mode in ("quad_perm:[1,0,3,2]", "quad_perm:[2,3,0,1]", "row_half_mirror"):
        for i in range(16): A(f"v_add_f32_dpp v{S+i}, v{S+i}, v{S+i} {mode} {DPPM}")
    A(f"s_mov_b32 s{sT1}, {SCALE:#x}")
    for k in range(8): A(f"v_cvt_pk_bf16_f32 v{AT+k}, v{S+2*k}, v{S+2*k+1}")
    for k in range(8):
        A(f"v_lshlrev_b32 v{S+2*k}, 16, v{AT+k}"); A(f"v_and_b32 v{S+2*k+1}, s{sHI}, v{AT+k}")
    for i in range(16): A(f"v_mul_f32 v{S+i}, s{sT1}, v{S+i}")
    for k in range(8): A(f"v_cvt_pk_bf16_f32 v{AT+k}, v{S+2*k}, v{S+2*k+1}")
    for k in range(8):
        A(f"v_lshlrev_b32 v{S+2*k}, 16, v{AT+k}"); A(f"v_and_b32 v{S+2*k+1}, s{sHI}, v{AT+k}")
    A(f"v_max3_f32 v2, v{S}, v{S+1}, v{S+2}"); A(f"v_max3_f32 v3, v{S+3}, v{S+4}, v{S+5}")
    A(f"v_max3_f32 v2, v2, v{S+6}, v{S+7}"); A(f"v_max3_f32 v3, v3, v{S+8}, v{S+9}")
    A(f"v_max3_f32 v2, v2, v{S+10}, v{S+11}"); A(f"v_max3_f32 v3, v3, v{S+12}, v{S+13}")
    A(f"v_max3_f32 v2, v2, v{S+14}, v{S+15}"); A(f"v_max_f32 v2, v2, v3")
    xlane("v_max_f32", 2, 3)
    A(f"""
      s_lshl_b32 s{sT0}, s{sW}, 2
      v_mov_b32 v3, s{sT0}
      v_mov_b32 v4, 1
      v_mov_b32 v5, 0
      s_mov_b64 exec, 1
      ds_write_b32 v3, v2 offset:{L_M}
      ds_add_u32 v5, v4 offset:{L_CNT+4}
      s_mov_b64 exec, -1
    """)
    st(7)
    issue(R_V)
    A.label("L_spinm")
    A(f"""
      ds_read_b32 v2, v5 offset:{L_CNT+4}
      s_waitcnt lgkmcnt(0)
      v_readfirstlane_b32 s{sT0}, v2
      s_cmp_eq_u32 s{sT0}, 8
      s_cbranch_scc1 L_spinm_ok
    """)
    spin_check("L_spinm", 2)
    A.label("L_spinm_ok")
    A(f"""
      ds_read_b128 {vr(AT,4)}, v5 offset:{L_M}
      ds_read_b128 {vr(AT+4,4)}, v5 offset:{L_M+16}
      s_mov_b32 s{sT1}, {LOG2E:#x}
      s_waitcnt lgkmcnt(0)
      v_max3_f32 v2, v{AT}, v{AT+1}, v{AT+2}
      v_max3_f32 v3, v{AT+3}, v{AT+4}, v{AT+5}
      v_max3_f32 v2, v2, v{AT+6}, v{AT+7}
      v_max_f32 v2, v2, v3
    """)
    for i in range(16): A(f"v_sub_f32 v{S+i}, v{S+i}, v2")
    for i in range(16): A(f"v_mul_f32 v{S+i}, s{sT1}, v{S+i}")
    for i in range(16): A(f"v_exp_f32 v{S+i}, v{S+i}")
    A(f"v_mul_f32 v2, s{sT1}, v2")
    setexec(0, 0x00800000)
    A(f"v_mov_b32 v{R}, v2")
    fullexec()
    A(f"v_pk_add_f32 {vr(AT,2)}, {vr(S,2)}, {vr(S+2,2)}"); A(f"v_pk_add_f32 {vr(AT+2,2)}, {vr(S+4,2)}, {vr(S+6,2)}")
    A(f"v_pk_add_f32 {vr(AT+4,2)}, {vr(S+8,2)}, {vr(S+10,2)}"); A(f"v_pk_add_f32 {vr(AT+6,2)}, {vr(S+12,2)}, {vr(S+14,2)}")
    A(f"v_pk_add_f32 {vr(AT,2)}, {vr(AT,2)}, {vr(AT+2,2)}"); A(f"v_pk_add_f32 {vr(AT+4,2)}, {vr(AT+4,2)}, {vr(AT+6,2)}")
    A(f"v_pk_add_f32 {vr(AT,2)}, {vr(AT,2)}, {vr(AT+4,2)}"); A(f"v_add_f32 v3, v{AT}, v{AT+1}")
    for i in range(16): A(f"v_cvt_pk_bf16_f32 v{S+i}, v{S+i}, v{S+i}")
    xlane("v_add_f32", 3, 4)
    A(f"""
      s_mul_i32 s{sT0}, s{sW}, {2*OPS}
      v_mul_u32_u24 v4, {OPS}, v0
      v_add_u32 v4, s{sT0}, v4
      s_mov_b64 exec, 2
      v_mov_b32 v3, 0
      s_mov_b64 exec, 3
      ds_write_b32 v4, v3 offset:{L_OP + 54*16}
      s_mov_b64 exec, -1
    """)
    A(f"""
      v_lshrrev_b32 v4, 5, v0
      v_mul_u32_u24 v4, {OPS}, v4
      v_lshl_add_u32 v4, v6, 5, v4
      v_bfe_u32 v7, v0, 4, 1
      v_lshl_add_u32 v4, v7, 4, v4
      v_add_u32 v4, s{sT0}, v4
    """)
    def mkA(i):
        a = AT + 4 * (i & 1)
        for jx in range(4): A(f"v_and_b32 v{a+jx}, v{S+i}, v{MK+jx}")
    mkA(0)
    for i in range(16):
        if i < 15: mkA(i + 1)
        A(f"s_waitcnt vmcnt({45 - 3*i})")
        a = AT + 4 * (i & 1)
        for jx in range(3):
            c = "0" if i == 0 else vr(D + 4*jx, 4)
            A(f"v_mfma_f32_16x16x32_bf16 {vr(D+4*jx,4)}, {vr(a,4)}, {vr(P+12*i+4*jx,4)}, {c}")
    st(8)
    setexec(0x00ff00ff, 0xff00ff00)
    for jx in range(3): A(f"ds_write_b128 v4, {vr(D+4*jx,4)} offset:{L_OP + jx*256}")
    fullexec()
    A("s_waitcnt lgkmcnt(0)")
    A("s_barrier")
    A(f"s_cmp_gt_u32 s{sW}, 4"); A("s_cbranch_scc1 L_w567")
    A(f"s_cmp_lg_u32 s{sW}, 3"); A("s_cbranch_scc1 L_wotr")
    O = P
    A("v_lshlrev_b32 v2, 4, v0")
    setexec(0xffffffff, 0x0040ffff)
    for k in range(16): A(f"ds_read_b128 {vr(O+4*k,4)}, v2 offset:{L_OP + k*OPS}")
    A(f"""
      s_lshl_b32 s{sT0}, s{sH}, 3
      s_add_u32 s{sT0}, s{sT0}, s{sJJ}
      s_lshl_b32 s{sT0}, s{sT0}, 10
      s_add_u32 s{sT0}, s{sT0}, {WS_REC}
    """)
    for k in range(0, 16, 2):
        A(f"s_waitcnt lgkmcnt({14 - k})")
        for z in (0, 2): A(f"v_pk_add_f32 {vr(O+4*k+z,2)}, {vr(O+4*k+z,2)}, {vr(O+4*k+4+z,2)}")
        if k % 4 == 2:
            for z in (0, 2): A(f"v_pk_add_f32 {vr(O+4*(k-2)+z,2)}, {vr(O+4*(k-2)+z,2)}, {vr(O+4*k+z,2)}")
        if k % 8 == 6:
            for z in (0, 2): A(f"v_pk_add_f32 {vr(O+4*(k-6)+z,2)}, {vr(O+4*(k-6)+z,2)}, {vr(O+4*(k-2)+z,2)}")
    for z in (0, 2): A(f"v_pk_add_f32 {vr(R+z,2)}, {vr(O+z,2)}, {vr(O+32+z,2)}")
    setexec(0xffffffff, 0x00ffffff)
    for r in range(4): A(f"v_min_u32 v{R+r}, -2, v{R+r}")
    A(f"buffer_store_dwordx4 {vr(R,4)}, v2, {srd(R_WS)}, s{sT0} offen sc1")
    fullexec()
    A.label("L_wotr")
    WA = P + 64; OB = P + 96; A0 = P + 128; A1 = P + 132
    A(f"""
      v_lshrrev_b32 v4, 4, v0
      v_bfe_u32 v2, v0, 2, 2
      v_and_b32 v3, 3, v0
      s_lshl_b32 s{sT0}, s{sW}, 5
      s_add_u32 s{sT0}, s{sT0}, {L_WO}
      v_mul_u32_u24 v2, 160, v2
      v_lshl_add_u32 v2, v3, 3, v2
      v_add_u32 v2, s{sT0}, v2
      v_and_b32 v5, 1, v4
      v_mul_u32_u24 v5, 1280, v5
      v_add_u32 v5, v5, v2
      v_mul_u32_u24 v6, 1280, v4
      v_add_u32 v2, v6, v2
    """)
    for s in range(8):
        for hh in range(2):
            A(f"ds_read_b64_tr_b16 {vr(WA+4*s+2*hh,2)}, v{5 if s == 7 else 2} offset:{s*5120 + hh*640}")
    A(f"""
      v_mul_u32_u24 v6, {OVS}, v3
      v_lshl_add_u32 v6, v4, 4, v6
      v_lshrrev_b32 v7, 1, v3
      v_lshlrev_b32 v7, 12, v7
      v_and_b32 v5, 1, v0
      v_lshl_add_u32 v7, v5, 6, v7
      v_lshl_add_u32 v7, v4, 4, v7
      s_mul_i32 s{sT3}, s{sJJ}, 40960
      s_lshl_b32 s{sT1}, s{sH}, 7
      s_add_u32 s{sT3}, s{sT3}, s{sT1}
      s_lshl_b32 s{sT1}, s{sW}, 13
      s_add_u32 s{sT3}, s{sT3}, s{sT1}
      s_add_u32 s{sT3}, s{sT3}, {WS_YP}
      s_cmp_eq_u32 s{sW}, 4
      s_cbranch_scc1 L_bar4
      s_lshl_b32 s{sT0}, s{sH}, 13
      s_lshl_b32 s{sT1}, s{sW}, 11
      s_add_u32 s{sT0}, s{sT0}, s{sT1}
      s_add_u32 s{sT0}, s{sT0}, {WS_REC}
      v_lshlrev_b32 v2, 4, v0
      s_mul_i32 s{sT1}, s{sW}, {OVS}
      v_lshlrev_b32 v3, 3, v0
      v_add_u32 v3, s{sT1}, v3
      v_mov_b32 v8, 1.0
      v_mov_b32 v9, 0
      s_mov_b32 exec_hi, 0x00ffffff
    """)
    A.label("L_poll2")
    A(f"""
      buffer_load_dwordx4 {vr(A0,4)}, v2, {srd(R_WS)}, s{sT0} offen sc1
      buffer_load_dwordx4 {vr(A1,4)}, v2, {srd(R_WS)}, s{sT0} offen offset:1024 sc1
      s_waitcnt vmcnt(1)
      v_max3_u32 v10, v{A0}, v{A0+1}, v{A0+2}
      s_waitcnt vmcnt(0)
      v_max3_u32 v11, v{A1}, v{A1+1}, v{A1+2}
      v_max3_u32 v10, v10, v{A0+3}, v{A1+3}
      v_max_u32 v10, v10, v11
      v_cmp_eq_u32 vcc, -1, v10
      s_cmp_eq_u64 vcc, 0
      s_cbranch_scc1 L_poll2_ok
    """)
    spin_check("L_poll2", 1)
    A.label("L_poll2_ok")
    st(9)
    A(f"""
      v_readlane_b32 s{sT0}, v{A0}, 55
      v_readlane_b32 s{sT1}, v{A1}, 55
      v_readlane_b32 s{sT2}, v{A0}, 54
      v_readlane_b32 s{sT4}, v{A1}, 54
      v_cvt_pk_bf16_f32 v14, v{A1}, v{A1+1}
      v_cvt_pk_bf16_f32 v15, v{A1+2}, v{A1+3}
      v_mov_b32 v10, s{sT0}
      v_max_f32 v12, s{sT1}, v10
      v_sub_f32 v10, v10, v12
      v_sub_f32 v11, s{sT1}, v12
      v_exp_f32 v10, v10
      v_exp_f32 v11, v11
      s_mov_b32 exec_lo, 0
      s_mov_b32 exec_hi, 0x003f0000
      ds_write_b64 v3, v[14:15] offset:{L_OV + 48}
      s_mov_b32 exec_lo, -1
      s_mov_b32 exec_hi, 0x0000ffff
      v_mul_f32 v12, s{sT2}, v10
      v_fma_f32 v12, v11, s{sT4}, v12
      v_rcp_f32 v12, v12
      v_mul_f32 v8, v10, v12
      v_mul_f32 v9, v11, v12
      s_mov_b32 exec_hi, 0x003fffff
      v_pk_mul_f32 {vr(A0,2)}, {vr(A0,2)}, v[8:9] op_sel_hi:[1,0]
      v_pk_mul_f32 {vr(A0+2,2)}, {vr(A0+2,2)}, v[8:9] op_sel_hi:[1,0]
      v_pk_fma_f32 {vr(A0,2)}, {vr(A1,2)}, v[8:9], {vr(A0,2)} op_sel:[0,1,0] op_sel_hi:[1,1,1]
      v_pk_fma_f32 {vr(A0+2,2)}, {vr(A1+2,2)}, v[8:9], {vr(A0+2,2)} op_sel:[0,1,0] op_sel_hi:[1,1,1]
      v_cvt_pk_bf16_f32 v16, v{A0}, v{A0+1}
      v_cvt_pk_bf16_f32 v17, v{A0+2}, v{A0+3}
      ds_write_b64 v3, v[16:17] offset:{L_OV}
      s_mov_b64 exec, -1
    """)
    A.label("L_bar4")
    A("s_waitcnt lgkmcnt(0)")
    A("s_barrier")
    for s in range(8): A(f"ds_read_b128 {vr(OB+4*s,4)}, v6 offset:{L_OV + s*64}")
    for s in range(8):
        A(f"s_waitcnt lgkmcnt({7 - s})")
        c = "0" if s == 0 else vr(D, 4)
        A(f"v_mfma_f32_16x16x32_bf16 {vr(D,4)}, {vr(WA+4*s,4)}, {vr(OB+4*s,4)}, {c}")
    setexec(0x000f000f, 0x000f000f)
    for r in range(4): A(f"v_min_u32 v{D+r}, -2, v{D+r}")
    A(f"buffer_store_dwordx4 {vr(D,4)}, v7, {srd(R_WS)}, s{sT3} offen sc1")
    A("s_branch L_fin")
    A.label("L_w567")
    Y = P
    A(f"""
      s_cmp_lg_u32 s{sW}, 5
      s_cbranch_scc1 L_fin
      s_lshl_b32 s{sT0}, s{sHL}, 3
      s_add_u32 s{sT0}, s{sT0}, s{sG}
      s_cmp_ge_u32 s{sT0}, 10
      s_cbranch_scc1 L_fin
      s_and_b32 s{sT1}, s{sT0}, 1
      s_mul_i32 s{sT1}, s{sT1}, 2560
      s_lshr_b32 s{sT2}, s{sT0}, 1
      s_lshl_b32 s{sT2}, s{sT2}, 5
      s_add_u32 s{sT1}, s{sT1}, s{sT2}
      s_mul_i32 s{sT2}, s{sJJ}, 160
      s_add_u32 s{sT1}, s{sT1}, s{sT2}
      v_bfe_u32 v3, v0, 2, 1
      v_mul_u32_u24 v3, 1280, v3
      v_and_b32 v4, 3, v0
      v_lshl_add_u32 v3, v4, 3, v3
      buffer_load_dwordx2 v[8:9], v3, {srd(R_X)}, s{sT1} offen nt
      s_mul_i32 s{sT2}, s{sJJ}, 10
      s_add_u32 s{sT0}, s{sT0}, s{sT2}
      s_lshl_b32 s{sT0}, s{sT0}, 12
      s_add_u32 s{sT0}, s{sT0}, {WS_YP}
      v_lshlrev_b32 v2, 4, v0
      s_waitcnt vmcnt(0)
      v_lshlrev_b32 v10, 16, v8
      v_and_b32 v11, s{sHI}, v8
      v_lshlrev_b32 v12, 16, v9
      v_and_b32 v13, s{sHI}, v9
      s_barrier
    """)
    A.label("L_poll3")
    for i in range(4): A(f"buffer_load_dwordx4 {vr(Y+4*i,4)}, v2, {srd(R_WS)}, s{sT0} offen offset:{i*1024} sc1")
    A(f"""
      s_waitcnt vmcnt(2)
      v_max3_u32 v14, v{Y}, v{Y+1}, v{Y+2}
      v_max3_u32 v15, v{Y+3}, v{Y+4}, v{Y+5}
      v_max3_u32 v14, v14, v{Y+6}, v{Y+7}
      s_waitcnt vmcnt(0)
      v_max3_u32 v15, v15, v{Y+8}, v{Y+9}
      v_max3_u32 v14, v14, v{Y+10}, v{Y+11}
      v_max3_u32 v15, v15, v{Y+12}, v{Y+13}
      v_max3_u32 v14, v14, v{Y+14}, v{Y+15}
      v_max_u32 v14, v14, v15
      v_cmp_eq_u32 vcc, -1, v14
      s_cmp_eq_u64 vcc, 0
      s_cbranch_scc1 L_poll3_ok
    """)
    spin_check("L_poll3", 1)
    A.label("L_poll3_ok")
    st(9)
    for z in (0, 2):
        A(f"v_pk_add_f32 {vr(Y+z,2)}, {vr(Y+z,2)}, {vr(Y+4+z,2)}"); A(f"v_pk_add_f32 {vr(Y+8+z,2)}, {vr(Y+8+z,2)}, {vr(Y+12+z,2)}")
    for z in (0, 2): A(f"v_pk_add_f32 {vr(Y+z,2)}, {vr(Y+z,2)}, {vr(Y+8+z,2)}")
    for r in range(4): A(f"v_add_f32_dpp v{Y+r}, v{Y+r}, v{Y+r} row_ror:8 {DPPM}")
    for sw in ("v_permlane16_swap_b32", "v_permlane32_swap_b32"):
        for r in range(4): A(f"v_mov_b32 v{Y+4+r}, v{Y+r}")
        for r in range(4): A(f"{sw} v{Y+r}, v{Y+4+r}")
        for z in (0, 2): A(f"v_pk_add_f32 {vr(Y+z,2)}, {vr(Y+z,2)}, {vr(Y+4+z,2)}")
    for z in (0, 2): A(f"v_pk_add_f32 {vr(Y+z,2)}, {vr(Y+z,2)}, {vr(10+z,2)}")
    A(f"v_cvt_pk_bf16_f32 v8, v{Y}, v{Y+1}"); A(f"v_cvt_pk_bf16_f32 v9, v{Y+2}, v{Y+3}")
    A("s_mov_b64 exec, 0xff")
    A(f"buffer_store_dwordx2 v[8:9], v3, {srd(R_OUT)}, s{sT1} offen")
    A.label("L_fin")
    if stamp:
        A("s_mov_b64 exec, -1")
        A("s_memrealtime s[100:101]")
        A("s_getreg_b32 s69, hwreg(HW_REG_XCC_ID)")
        A("s_waitcnt lgkmcnt(0)")
        A("v_mov_b32 v2, 0")
        for i in range(11): A(f"v_writelane_b32 v2, s{ST0+2*i}, {i}")
        A("v_writelane_b32 v2, s69, 15"); A(f"v_writelane_b32 v2, s{sSPIN}, 14")
        A(f"s_lshl_b32 s70, s2, 3"); A(f"s_add_u32 s70, s70, s{sW}"); A("s_lshl_b32 s70, s70, 6"); A(f"s_add_u32 s70, s70, {WS_STAMP}")
        A("v_lshlrev_b32 v3, 2, v0"); A("s_mov_b64 exec, 0xffff")
        A(f"buffer_store_dword v2, v3, {srd(R_WS)}, s70 offen")
    A.label("L_end")
    A("s_endpgm")
    A.raw('.section .rodata,"a"'); A.raw(".p2align 6"); A.raw(f".amdhsa_kernel {NAME}_kernel")
    A.raw("  .amdhsa_next_free_vgpr 256\n  .amdhsa_next_free_sgpr 102\n  .amdhsa_accum_offset 256\n  .amdhsa_group_segment_fixed_size 0\n  .amdhsa_kernarg_size 96\n  .amdhsa_user_sgpr_count 2\n  .amdhsa_user_sgpr_kernarg_segment_ptr 1\n  .amdhsa_system_sgpr_workgroup_id_x 1\n  .amdhsa_float_denorm_mode_32 3\n.end_amdhsa_kernel")
    return A.text()

if __name__ == "__main__":
    open("main.s", "w").write(gen(False))
    open("main_st.s", "w").write(gen(True))
```

```python
import sys; sys.path.insert(0, "work")
from asmlib import Asm
import numpy as np
NAME = "parallel_sum__sliding_block_cached__glu_gated_swiglu__decode"

WS_PART = 0
WS_EPOCH = 0xBF000
WS_REC = 0xC0000
WS_YP = 0x100000
WS_X = 0x180000
WS_STAMP = 0x200000
WS_SIZE = 0x400000
L_Q = 0; L_M = 384; L_CNT = 416; L_OV = 512; OVS = 528
L_OP = 2688; OPS = 896
L_WO = 17024
L_XN = 55424; XNS = 1296
L_SC = L_XN + 4 * XNS + 64
L_SP = L_SC + 1024
L_T = L_SP + 1024 + 256
LDS_SIZE = L_T + 3 * 16384
sX, sK, sV, sWQ, sWO, sBX, sW1, sW3, sW2, sOUT, sDBG, sWS = 4, 6, 8, 10, 12, 14, 16, 18, 20, 22, 24, 26
R_K, R_V, R_WS, R_WO, R_W2, R_X, R_OUT, R_W = 28, 32, 36, 40, 44, 48, 52, 52
TB = 56
sW, sG, sJ, sHL, sC, sH, sB, sHALF = 60, 61, 62, 63, 64, 65, 66, 67
sHI = 68
sT0, sT1, sT2 = 69, 70, 71
sT3, sT4, sT5, sT6 = 76, 77, 78, 79
sSPIN = 0
sLIM = 1
sEP = 14
sTW = 15
sROT = 3
sTS = 24
sSTP = 74; sIDX = 75; sKVO = 72; sEPN = 73
ST0 = 80
vKV = 1
Q = 8; S = 20; MK = 36; AT = 40; D = 48; R = 60; P = 64
LOG2E = 0x3fb8aa3b
SCALE = 0x3d93cd3a
assert np.float32(192 ** -0.5).view(np.uint32) == SCALE
INV640 = int(np.float32(1.0 / 640).view(np.uint32))
EPS = int(np.float32(1e-5).view(np.uint32))
DPPM = "row_mask:0xf bank_mask:0xf"
SPINMAX = 200000
ITS = 12288
KVREC = 15 * ITS + 3072

def srd(r): return f"s[{r}:{r+3}]"
def vr(a, n): return f"v[{a}:{a+n-1}]"

def gen(stamp=False, prof=False, kvfl="nt", wfl="", wofl="", prep_at=11, early=12, padat=9, thr=0, gate=False, rel=99,
        pp3=4, pretouch=True, wgrot=109, rsh=3, cross=True, steal=True, kap=57, bias=2048, gmax=8, tsat=26, px=5, prex=True, thrp=None, thr_rel=0, kfree=0, blk=1, perm=0, psh=8, amp=None, late=None, first=False, lwo=0, pp2=0, ilv=0, presum=False, t2s=0, t3s=0, ylay=False, preout=False, ofl="sc1", noep=False, early5=0, fred=False, lsig=44, step=0, krel=0, thrk=None, gp=None, pr=None, par=None, rank=None, rank2=None, rpre=True, rank3=None, wfirst=0, pst="sc1", gfl="sc1", fake_w=False, fake_wo=False, nopart=False, rfl="sc1", prel=False, cons2=False, warm3=False, d3=0, ovs=528, bmask=False, tprio=False, tp=False, opl=False, nonce=False, skewm=None, slowj=0, xfl="", rlf="sc1", xlate=0, xpre=False, nox=False, rel2=99, fast=0, clean=True, warmr=False, warmy=False, pclean=None, wb=0, pcs=0, pcr=True, f2fl="", cfl2="sc1", pbs=23040, kdeep=None):
    A = Asm()
    OVS = ovs; L_OV = 512 if ovs == 528 else L_SC - 64
    A.raw(f"; @launch grid=(256,1,1) block=(512,1,1) lds={LDS_SIZE}")
    A.raw('.amdgcn_target "amdgcn-amd-amdhsa--gfx950"'); A.raw(".text"); A.raw(f".globl {NAME}_kernel"); A.raw(".p2align 8")
    A.raw(f".type {NAME}_kernel,@function"); A.raw(f"{NAME}_kernel:")
    ITS = 12288 * blk; NROW = 16 // blk; KVREC = (NROW - 1) * ITS + 3072 * blk; RB = NROW.bit_length() - 1
    if pr: KVREC = 193536
    if gp:
        gU, gmask, gstep, ga, gcw, gcg, gch, gwhole = gp[:8]; gcx = gp[8] if len(gp) > 8 else 0
        KVREC = (gmask + 1) * gU - (ga * 3 * 3072)
        seen = set()
        for hf in range(2):
            for grp in range(2):
                for w_ in range(4):
                    ix = (gcw * w_ + gcx * (w_ >> 1) + gcg * grp + gch * hf) & gmask
                    base = {2: 0, 1: hf * 393216, 0: hf * 393216 + grp * 196608}[gwhole]
                    for i_ in range(16):
                        seen.add(base + ix * gU + w_ * ga * 3072); ix = (ix + gstep) & gmask
        assert seen == set(range(0, 786432, 3072)), "bad pattern"
    assert not (steal and blk != 1)
    PX = px if cross else 8
    lab = [0]
    gk = bool(wfirst and gate)
    def st(i, p=False):
        if stamp and (i == 0 or (p == prof and late is None)): A(f"s_memrealtime s[{ST0+2*i}:{ST0+2*i+1}]")
    def tpst(i):
        if tp: A(f"s_memtime s[{ST0+2*i}:{ST0+2*i+1}]")
    def clrst():
        if stamp and not prof and late is None:
            for i in range(1, 10): A(f"s_mov_b64 s[{ST0+2*i}:{ST0+2*i+1}], 0")
    def setexec(lo, hi):
        A(f"s_mov_b32 exec_lo, {lo:#x}"); A(f"s_mov_b32 exec_hi, {hi:#x}")
    def fullexec(): A("s_mov_b64 exec, -1")
    def xlane(op, r, t):
        A(f"{op}_dpp v{r}, v{r}, v{r} row_ror:8 {DPPM}")
        A(f"v_mov_b32 v{t}, v{r}"); A(f"v_permlane16_swap_b32 v{r}, v{t}"); A(f"{op} v{r}, v{r}, v{t}")
        A(f"v_mov_b32 v{t}, v{r}"); A(f"v_permlane32_swap_b32 v{r}, v{t}"); A(f"{op} v{r}, v{r}, v{t}")
    def rnd(r, t):
        A(f"v_cvt_pk_bf16_f32 v{t}, v{r}, v{r}"); A(f"v_lshlrev_b32 v{r}, 16, v{t}")
    def spin_check(lbl, sleep):
        if sleep: A(f"s_sleep {sleep}")
        A(f"s_add_u32 s{sSPIN}, s{sSPIN}, 1"); A(f"s_cmp_lt_u32 s{sSPIN}, {SPINMAX}"); A(f"s_cbranch_scc1 {lbl}"); A("s_branch L_fin")
    def lds_spin(name, off, cmp, val, sleep, va=5, vt=2, sd=sT0):
        A.label(name)
        A(f"""
          ds_read_b32 v{vt}, v{va} offset:{off}
          s_waitcnt lgkmcnt(0)
          v_readfirstlane_b32 s{sd}, v{vt}
          s_cmp_{cmp}_u32 s{sd}, {val}
          s_cbranch_scc1 {name}_ok
        """)
        spin_check(name, sleep)
        A.label(name + "_ok")
    def tags():
        if nonce:
            lab[0] += 1; q_ = lab[0]
            A(f"s_cmp_lg_u32 s{sEP}, 0"); A(f"s_cbranch_scc1 L_non{q_}_ok")
            A.label(f"L_non{q_}")
            A("v_mov_b32 v2, 0"); A(f"global_load_dword v2, v2, s[{sDBG}:{sDBG+1}] sc1"); A("s_waitcnt vmcnt(0)"); A(f"v_readfirstlane_b32 s{sEP}, v2")
            A(f"s_cmp_lg_u32 s{sEP}, 0"); A(f"s_cbranch_scc1 L_non{q_}_ok")
            spin_check(f"L_non{q_}", 16)
            A.label(f"L_non{q_}_ok")
        A(f"""
          s_add_u32 s{sEPN}, s{sEP}, {0 if nonce else 0x01010101}
          s_and_b32 s{TB}, s{sEPN}, 0xff
          s_bfe_u32 s{TB+1}, s{sEPN}, 0x80008
          s_bfe_u32 s{TB+2}, s{sEPN}, 0x80010
          s_lshr_b32 s{TB+3}, s{sEPN}, 24
        """)
    def tag4(r, m):
        for k in range(4): A(f"v_and_or_b32 v{r+k}, v{r+k}, v{m}, s{TB+k}")
    def untag(dst, src, n):
        for k in range(n): A(f"v_xor_b32 v{dst+k}, s{TB+(k&3)}, v{src+k}")
    def kload(n, r, yearly=False):
        i, jx = divmod(n, 3)
        t_ = thrp[n % len(thrp)] if thrp else thr
        if rank3 and (r == R_V or (n >= early and rank3["thr"][0] < 99)):
            if jx == 0 and n >= 3:
                lab[0] += 1; q_ = lab[0]
                vz, vt = (5, 10) if r == R_V else (8, 9)
                tl = rank3["lead"][(n // 3) % len(rank3["lead"])]
                A("s_waitcnt lgkmcnt(0)"); A(f"v_readfirstlane_b32 s{sSTP}, v{vt}")
                if n < 45: A(f"ds_read_b32 v{vt}, v{vz} offset:{L_CNT+12}")
                A(f"s_cmp_eq_u32 s{sSTP}, 4"); A(f"s_cbranch_scc1 L_pr{q_}")
                if 3 in rank3["deep"]:
                    if n >= 7: A("s_waitcnt vmcnt(6)")
                    A(f"s_cmp_eq_u32 s{sSTP}, 3"); A(f"s_cbranch_scc1 L_pr{q_}")
                if n >= t_: A(f"s_waitcnt vmcnt({t_-1})")
                if tl < t_:
                    A(f"s_cmp_lg_u32 s{sSTP}, 2"); A(f"s_cbranch_scc1 L_pr{q_}"); A(f"s_waitcnt vmcnt({tl-1})")
                A.label(f"L_pr{q_}")
            t_ = 0
        if rank2 and r == R_V:
            if jx == 0 and n >= 3:
                lab[0] += 1; q_ = lab[0]
                tl = rank2[2][(n // 3) % len(rank2[2])]
                if n >= rel2: A(f"s_cbranch_vccnz L_pr{q_}")
                else:
                    A("s_waitcnt lgkmcnt(0)"); A(f"v_readfirstlane_b32 s{sSTP}, v10")
                    if n < min(45, rel2 - 3): A(f"ds_read_b32 v10, v5 offset:{L_CNT+12}")
                    A(f"s_cmp_eq_u32 s{sSTP}, 3"); A(f"s_cbranch_scc1 L_pr{q_}")
                if n >= t_: A(f"s_waitcnt vmcnt({t_-1})")
                if tl < t_:
                    A(f"s_cmp_lg_u32 s{sSTP}, 2"); A(f"s_cbranch_scc1 L_pr{q_}"); A(f"s_waitcnt vmcnt({tl-1})")
                A.label(f"L_pr{q_}")
            t_ = 0
        if rank and r == R_V:
            if jx == 0 and n >= 3:
                lab[0] += 1; q_ = lab[0]
                tl = rank[3][(n // 3) % len(rank[3])]
                if n >= rank[4]: A(f"s_cbranch_vccnz L_pr{q_}")
                else: A(f"s_cmp_eq_u32 s{sSTP}, 3"); A(f"s_cbranch_scc1 L_pr{q_}")
                if n >= t_: A(f"s_waitcnt vmcnt({t_-1})")
                if tl < t_ and n < rank[4]:
                    A(f"s_cbranch_vccz L_pr{q_}"); A(f"s_waitcnt vmcnt({tl-1})")
                A.label(f"L_pr{q_}")
            t_ = 0
        if par and not (r == R_K and n < early):
            te, to, re_, ro, xm = par
            if jx == 0 and n >= 6:
                lab[0] += 1; q_ = lab[0]
                if r == R_V and n >= max(re_, ro): A(f"s_cbranch_vccnz L_pr{q_}")
                elif r == R_V and n >= ro: A(f"s_cmp_eq_u32 s{sSTP}, 3"); A(f"s_cbranch_scc1 L_pr{q_}")
                A(f"s_waitcnt vmcnt({to-1})")
                if te != to:
                    A(f"s_bitcmp1_b32 s{sSTP}, 0"); A(f"s_cbranch_scc1 L_pr{q_}"); A(f"s_waitcnt vmcnt({te-1})")
                A.label(f"L_pr{q_}")
            t_ = 0
        if r == R_K and thrk: t_ = thrk[n % len(thrk)]
        if r == R_K and kdeep and t_ and kdeep[0] <= n < kdeep[1]: t_ = kdeep[2]
        if slowj and r == R_K and jx == 0 and 1 <= i <= slowj:
            lab[0] += 1
            A(f"s_cbranch_vccz L_sj{lab[0]}"); A("s_waitcnt vmcnt(0)"); A.label(f"L_sj{lab[0]}")
        if yearly and krel: t_ = 0
        released = (r == R_V and n >= rel and thr and t_ and n >= t_) or (r == R_K and early <= n < krel and t_)
        if released:
            lab[0] += 1; rl = lab[0]
            A(f"s_cbranch_vccnz L_rel{rl}")
        if thr and t_ and n >= t_ and not (r == R_K and n < kfree): A(f"s_waitcnt vmcnt({t_-1})")
        if released:
            A.label(f"L_rel{rl}")
            if thr_rel and n >= thr_rel: A(f"s_waitcnt vmcnt({thr_rel-1})")
        so = sT0
        va = vKV
        if pr:
            row = pr[i]
            if row == 15: va = 10
            if jx == 0:
                if row in (5, 10):
                    A(f"s_cmp_ge_u32 s{sIDX}, {row // 5}"); A(f"s_cselect_b32 s{sT0}, 33792, 0"); A(f"s_add_u32 s{sT0}, s{sT0}, {row*6144 + (row//5 - 1)*33792}")
                elif row == 15:
                    A(f"""
                      s_cmp_eq_u32 s{sIDX}, 3
                      s_cselect_b32 s{sT0}, 33792, 0
                      v_lshrrev_b32 v10, 5, v0
                      v_mad_u32_u24 v10, v10, s{sT0}, v{vKV}
                      s_cselect_b32 s{sT0}, 0, {15*6144 + 67584 - 59904}
                      s_add_u32 s{sT0}, s{sT0}, 59904
                    """)
                else:
                    v_ = row * 6144 + (4 * row // 21) * 33792
                    A(f"s_movk_i32 s{sT0}, {v_}" if v_ < 32768 else f"s_mov_b32 s{sT0}, {v_}")
        elif gp:
            if n == 0: A(f"s_mov_b32 s{sIDX}, s{sROT}"); A(f"s_mul_i32 s{sT0}, s{sIDX}, {gU}")
            elif jx == 0:
                A(f"s_add_u32 s{sIDX}, s{sIDX}, {gstep}"); A(f"s_and_b32 s{sIDX}, s{sIDX}, {gmask}"); A(f"s_mul_i32 s{sT0}, s{sIDX}, {gU}")
        elif step and not wgrot:
            if jx == 0 and i % blk == 0:
                v_ = ((i // blk) * step % NROW) * ITS
                A(f"s_movk_i32 s{sT0}, {v_}" if v_ < 32768 else f"s_mov_b32 s{sT0}, {v_}")
        elif step:
            if n == 0: A(f"s_mov_b32 s{sIDX}, s{sROT}"); A(f"s_mul_i32 s{sT0}, s{sIDX}, {ITS}")
            elif jx == 0 and i % blk == 0:
                A(f"s_add_u32 s{sIDX}, s{sIDX}, {step}"); A(f"s_and_b32 s{sIDX}, s{sIDX}, {NROW-1}"); A(f"s_mul_i32 s{sT0}, s{sIDX}, {ITS}")
        elif perm:
            if n == 0: A(f"s_mov_b32 s{sIDX}, s{sROT}"); A(f"s_mul_i32 s{sT0}, s{sIDX}, {ITS}")
            elif jx == 0 and i % blk == 0:
                A(f"s_add_u32 s{sIDX}, s{sIDX}, s{sSTP}"); A(f"s_and_b32 s{sIDX}, s{sIDX}, {NROW-1}"); A(f"s_mul_i32 s{sT0}, s{sIDX}, {ITS}")
        elif n == 0: A(f"s_mov_b32 s{sT0}, s{sROT}")
        elif jx == 0 and i % blk == 0:
            A(f"s_addk_i32 s{sT0}, {ITS}"); A(f"s_cmp_lt_u32 s{sT0}, s{r+2}"); A(f"s_cselect_b32 s{sT0}, s{sT0}, 0")
        if steal and r == R_V and i >= 16 - gmax:
            so = sT1
            if jx == 0: A(f"s_cmp_gt_u32 s{sLIM}, {i}"); A(f"s_cselect_b32 s{sT1}, s{sT0}, 2.0")
        A(f"buffer_load_dwordx4 {vr(P+4*n,4)}, v{va}, {srd(r)}, s{so} offen offset:{(i % blk)*3072 + jx*128} {kvfl}")
    def idx(old, part=0):
        if part != 2: idA()
        if part != 1: idB(old)
    def idA():
        A(f"""
          v_and_b32 v0, 63, v0
          s_and_b32 s{sG}, s2, 7
          s_lshr_b32 s{sJ}, s2, 3
        """)
        if cross:
            A(f"""
              s_lshr_b32 s{sHALF}, s{sG}, 2
              s_xor_b32 s{sT0}, s{sG}, {PX}
              s_min_u32 s{sT0}, s{sT0}, s{sG}
              s_lshr_b32 s{sH}, s2, 5
              s_lshl3_add_u32 s{sH}, s{sT0}, s{sH}
              s_and_b32 s{sB}, s{sJ}, 3
            """)
        else:
            A(f"""
              s_lshr_b32 s{sH}, s2, 6
              s_lshl2_add_u32 s{sH}, s{sG}, s{sH}
              s_bfe_u32 s{sB}, s2, 0x20004
              s_and_b32 s{sHALF}, s{sJ}, 1
            """)
    def idB(old):
        permcode = f"s_mulk_i32 s{sROT}, {ITS}"
        if perm: permcode = f"s_mul_i32 s{sSTP}, s2, {perm}\ns_lshr_b32 s{sSTP}, s{sSTP}, {psh}\ns_or_b32 s{sSTP}, s{sSTP}, 1"
        if step: permcode = ""
        hashcode = f"""s_mul_i32 s{sT2}, s2, {wgrot}
          s_bfe_u32 s{sROT}, s{sT2}, {(RB << 16) + rsh:#x}
          {permcode}
          s_bitcmp{'0' if old else '1'}_b32 s{sT2}, {rsh + RB}
          s_cselect_b32 s{sT2}, {64 // blk}, 0
          s_add_u32 s{sT0}, s{sT0}, s{sT2}"""
        if step and not wgrot: hashcode = ""
        if pr:
            A(f"""
              s_lshl_b32 s{sT0}, s{sB}, 5
              s_add_u32 s{sT0}, s{sT0}, s{sH}
              s_lshl3_add_u32 s{sT0}, s{sT0}, s{sHALF}
              s_lshl_b32 s{sT0}, s{sT0}, 8
              s_and_b32 s{sIDX}, s{sW}, 3
              s_add_u32 s{sT0}, s{sT0}, s{sIDX}
              s_addk_i32 s{sT0}, {6*256 + (128 if old else 0)}
              s_mul_i32 s{sKVO}, s{sT0}, 1536
              v_lshrrev_b32 v5, 3, v0
              v_and_b32 v6, 7, v0
              v_lshrrev_b32 v{vKV}, 5, v0
              v_mul_u32_u24 v{vKV}, 80, v{vKV}
              v_add_u32 v{vKV}, v{vKV}, v5
              v_mul_u32_u24 v{vKV}, 384, v{vKV}
              v_lshl_add_u32 v{vKV}, v6, 4, v{vKV}
              s_mov_b32 s{R_K+2}, {KVREC}
              s_mov_b32 s{R_K+3}, 0x20000
            """)
            return
        if gp:
            w0 = 0 if old else 4
            A(f"s_lshl_b32 s{sT0}, s{sB}, 5"); A(f"s_add_u32 s{sT0}, s{sT0}, s{sH}")
            if gwhole == 2: A(f"s_lshl_b32 s{sT0}, s{sT0}, 10")
            else: A(f"s_lshl3_add_u32 s{sT0}, s{sT0}, s{sHALF}"); A(f"s_lshl_b32 s{sT0}, s{sT0}, 7")
            if ga: A(f"s_add_u32 s{sT0}, s{sT0}, s{sW}")
            A(f"s_addk_i32 s{sT0}, {6*128 - ga*w0 + (64 if (old and gwhole == 0) else 0)}")
            A(f"s_mul_i32 s{sKVO}, s{sT0}, 3072")
            c0 = ((gcg if old else 0) - gcw * w0) & gmask
            if gcw: A(f"s_mul_i32 s{sROT}, s{sW}, {gcw}"); A(f"s_add_u32 s{sROT}, s{sROT}, {c0}")
            else: A(f"s_mov_b32 s{sROT}, {c0}")
            if gcx: A(f"s_bitcmp1_b32 s{sW}, 1"); A(f"s_cselect_b32 s{sT2}, {gcx & gmask}, 0"); A(f"s_add_u32 s{sROT}, s{sROT}, s{sT2}")
            if gch: A(f"s_mul_i32 s{sT2}, s{sHALF}, {gch}"); A(f"s_add_u32 s{sROT}, s{sROT}, s{sT2}")
            if gch or gcw: A(f"s_and_b32 s{sROT}, s{sROT}, {gmask}")
            A(f"""
              v_lshrrev_b32 v5, 3, v0
              v_and_b32 v6, 7, v0
              v_mul_u32_u24 v{vKV}, 384, v5
              v_lshl_add_u32 v{vKV}, v6, 4, v{vKV}
              s_mov_b32 s{R_K+2}, {KVREC}
              s_mov_b32 s{R_K+3}, 0x20000
            """)
            return
        A(f"""
          s_lshl_b32 s{sT0}, s{sB}, 5
          s_add_u32 s{sT0}, s{sT0}, s{sH}
          s_lshl3_add_u32 s{sT0}, s{sT0}, s{sHALF}
          s_lshl_b32 s{sT0}, s{sT0}, {RB + 3}
          s_add_u32 s{sT0}, s{sT0}, s{sW}
          {hashcode}
          v_lshrrev_b32 v5, 3, v0
          v_and_b32 v6, 7, v0
          v_mul_u32_u24 v{vKV}, 384, v5
          v_lshl_add_u32 v{vKV}, v6, 4, v{vKV}
          s_mov_b32 s{R_K+2}, {KVREC}
          s_mov_b32 s{R_K+3}, 0x20000
          s_addk_i32 s{sT0}, {6*128//blk - (0 if old else 4) + (64//blk if (old and step and not wgrot) else 0)}
          s_mul_i32 s{sKVO}, s{sT0}, {3072*blk}
        """)
    def setup2():
        A(f"""
          s_add_u32 s{R_V}, s{sV}, s{sKVO}
          s_addc_u32 s{R_V+1}, s{sV+1}, 0
          s_mov_b32 s{sSPIN}, 0
          s_mov_b32 s{sLIM}, 16
          s_and_b32 s{sHL}, s{sH}, 3
          s_lshl2_add_u32 s{sC}, s{sHALF}, s{sB}
          s_mov_b32 s{sHI}, 0xffff0000
          {'' if wfirst else f's_mul_i32 s{sT1}, s{sH}, 245760'}
          {'' if wfirst else f's_mul_i32 s{sT2}, s{sC}, 160'}
          {'' if wfirst else f's_add_u32 s{sT1}, s{sT1}, s{sT2}'}
          {'' if wfirst else f's_mul_i32 s{sT3}, s{sH}, 61440'}
          {'' if wfirst else f's_add_u32 s{sT3}, s{sT3}, s{sT2}'}
          s_mov_b32 s{R_V+2}, {KVREC}
          s_mov_b32 s{R_V+3}, 0x20000
          s_mov_b32 s{R_WS+2}, {WS_SIZE}
          s_mov_b32 s{R_WS+3}, 0x20000
          {'' if wfirst else f's_mov_b32 s{R_WO+2}, {191*1280+160}'}
          {'' if wfirst else f's_mov_b32 s{R_WO+3}, 0x20000'}
          {'' if wfirst else f's_mov_b32 s{R_W2+2}, {47*1280+160}'}
          {'' if wfirst else f's_mov_b32 s{R_W2+3}, 0x20000'}
          s_mov_b32 s{R_X+2}, 5120
          s_mov_b32 s{R_X+3}, 0x20000
          s_mov_b32 s{R_OUT+2}, 5120
          s_mov_b32 s{R_OUT+3}, 0x20000
          {'' if wfirst else f's_add_u32 s{R_WO}, s{sWO}, s{sT1}'}
          {'' if wfirst else f's_addc_u32 s{R_WO+1}, s{sWO+1}, 0'}
          {'' if wfirst else f's_add_u32 s{R_W2}, s{sW2}, s{sT3}'}
          {'' if wfirst else f's_addc_u32 s{R_W2+1}, s{sW2+1}, 0'}
          s_mov_b64 s[{R_WS}:{R_WS+1}], s[{sWS}:{sWS+1}]
          s_mov_b64 s[{R_X}:{R_X+1}], s[{sX}:{sX+1}]
          s_mov_b64 s[{R_OUT}:{R_OUT+1}], s[{sOUT}:{sOUT+1}]
          s_xor_b32 s{sTW}, s{sW}, 4
        """)
    def recoff(sd, st_):
        A(f"""
          s_lshl1_add_u32 s{st_}, s{sB}, s{sHALF}
          s_lshl3_add_u32 s{sd}, s{sH}, s{st_}
          s_lshl_b32 s{sd}, s{sd}, 10
          s_add_u32 s{sd}, s{sd}, {WS_REC}
        """)
    def kstamp(n):
        if n % 12 == 11: st(1 + n // 12, True)

    def dma_addr(va=2, vb=3):
        A(f"""
          v_mul_u32_u24 v{va}, 26, v0
          v_lshrrev_b32 v{va}, 8, v{va}
          v_mul_u32_u24 v{vb}, 10, v{va}
          v_sub_u32 v{vb}, v0, v{vb}
          v_mul_u32_u24 v{va}, 1280, v{va}
          v_lshl_add_u32 v{va}, v{vb}, 4, v{va}
        """)
    def dma(sw, va=2):
        A(f"""
          s_mul_i32 s{sT0}, s{sw}, 30720
          s_mul_i32 s{sT1}, s{sw}, 3840
          s_add_u32 m0, s{sT1}, {L_WO}
          s_mov_b32 exec_hi, 0x0fffffff
        """)
        for i in range(4):
            A(f"buffer_load_dwordx4 v{va}, {srd(R_WO)}, s{sT0} offen {wofl} lds")
            if i < 3: A(f"s_add_u32 m0, m0, 960"); A(f"s_add_u32 s{sT0}, s{sT0}, 7680")
        A(f"""
          s_mul_i32 s{sT0}, s{sw}, 7680
          s_mul_i32 s{sT1}, s{sw}, 960
          s_add_u32 m0, s{sT1}, {L_WO + 192*160}
          buffer_load_dwordx4 v{va}, {srd(R_W2)}, s{sT0} offen {wofl} lds
          s_mov_b32 exec_hi, -1
        """)
    st(0)
    A("s_load_dwordx16 s[4:19], s[0:1], 0")
    A("s_load_dwordx8 s[20:27], s[0:1], 64")
    A(f"""
      v_lshrrev_b32 v2, 6, v0
      s_cmpk_ge_u32 s2, 0x100
      s_cbranch_scc1 L_end
      v_readfirstlane_b32 s{sW}, v2
      s_cmp_lt_u32 s{sW}, 4
      s_cbranch_scc1 L_pad
    """)
    idx(False, 1 if wfirst else 0)
    if wfirst:
        dma_addr()
        A(f"""
          s_lshl2_add_u32 s{sC}, s{sHALF}, s{sB}
          s_lshl2_add_u32 s{sT5}, s{sH}, s{sW}
          s_sub_u32 s{sT5}, s{sT5}, 4
          s_mul_i32 s{sT2}, s{sC}, 160
          s_mul_i32 s{sT4}, s{sT5}, 61440
          s_add_u32 s{sT4}, s{sT4}, s{sT2}
          s_mov_b32 s{R_WO+2}, {47*1280+160}
          s_mov_b32 s{R_WO+3}, 0x20000
          s_mul_i32 s{sT1}, s{sW}, 7680
          s_sub_u32 m0, s{sT1}, {4*7680 - L_WO}
          s_movk_i32 s{sT1}, 960
          s_mov_b32 exec_hi, 0x0fffffff
          s_setprio 2
          s_waitcnt lgkmcnt(0)
          s_add_u32 s{R_WO}, s{sWO}, s{sT4}
          s_addc_u32 s{R_WO+1}, s{sWO+1}, 0
        """)
        if fake_wo: A(f"s_mov_b32 s{R_WO+2}, 0")
        for i in range(8):
            if i == 0: so = "0"
            else:
                so = f"s{sT0}"
                A(f"s_add_u32 m0, m0, s{sT1}"); A(f"s_movk_i32 s{sT0}, 7680" if i == 1 else f"s_addk_i32 s{sT0}, 7680")
            A(f"buffer_load_dwordx4 v2, {srd(R_WO)}, {so} offen {wofl} lds")
            if i == padat:
                A("s_branch L_padskip"); A.label("L_pad"); A("s_branch L_old"); A.label("L_padskip")
        A(f"""
          s_mul_i32 s{sT4}, s{sT5}, 15360
          s_add_u32 s{sT4}, s{sT4}, s{sT2}
          s_add_u32 s{R_W2}, s{sW2}, s{sT4}
          s_addc_u32 s{R_W2+1}, s{sW2+1}, 0
          s_mov_b32 s{R_W2+2}, {0 if fake_wo else 11*1280+160}
          s_mov_b32 s{R_W2+3}, 0x20000
          s_mul_i32 s{sT0}, s{sW}, 1920
          s_add_u32 m0, s{sT0}, {L_WO + 192*160 - 4*1920}
          s_movk_i32 s{sT0}, 7680
          buffer_load_dwordx4 v2, {srd(R_W2)}, 0 offen {wofl} lds
          s_add_u32 m0, m0, s{sT1}
          buffer_load_dwordx4 v2, {srd(R_W2)}, s{sT0} offen {wofl} lds
          s_mov_b32 exec_hi, -1
        """)
        idx(False, 2)
        A(f"s_add_u32 s{R_K}, s{sK}, s{sKVO}"); A(f"s_addc_u32 s{R_K+1}, s{sK+1}, 0")
        assert early == 0
    else:
        A(f"""
          s_setprio 2
          s_waitcnt lgkmcnt(0)
          s_add_u32 s{R_K}, s{sK}, s{sKVO}
          s_addc_u32 s{R_K+1}, s{sK+1}, 0
        """)
        for n in range(early):
            kload(n, R_K, True); kstamp(n)
            if n == padat:
                A("s_branch L_padskip")
                A.label("L_pad")
                A("s_branch L_old")
                A.label("L_padskip")
    if not nonce: A(f"s_load_dword s{sEP}, s[{sWS}:{sWS+1}], {WS_EPOCH:#x}")
    if krel: A("s_mov_b64 vcc, -1")
    if slowj: A(f"s_cmp_ge_u32 s{sJ}, 30"); A("s_cselect_b64 vcc, -1, 0")
    A("s_barrier")
    A.label("L_krest")
    if rank3 and rank3["thr"][0] < 99: A("v_mov_b32 v8, 0"); A(f"ds_read_b32 v9, v8 offset:{L_CNT+12}")
    if par:
        A(f"""
          s_getreg_b32 s{sT2}, hwreg(HW_REG_XCC_ID, 0, 3)
          s_lshr_b32 s{sSTP}, {par[4]}, s{sT2}
          s_and_b32 s{sSTP}, s{sSTP}, 1
          s_cmp_lt_u32 s{sW}, 4
          s_cselect_b32 s{sT2}, 2, 0
          s_or_b32 s{sSTP}, s{sSTP}, s{sT2}
        """)
    for n in range(early, 48):
        kload(n, R_K); kstamp(n)
    A("s_branch L_kdone")
    A.label("L_old")
    A("s_setprio 3")
    idx(True)
    noncew = f"s_load_dword s{sEP}, s[{sWS}:{sWS+1}], {WS_EPOCH:#x}"
    if nonce:
        A(f"s_memrealtime s[{TB}:{TB+1}]")
        noncew = f"""s_or_b32 s{sT0}, s2, s{sW}
          s_cbranch_scc1 L_nonw
          s_mul_i32 s{sT0}, s{TB}, 0x9e3779b1
          s_max_u32 s{sT0}, s{sT0}, 1
          v_mov_b32 v3, s{sT0}
          s_mov_b64 exec, 1
          global_store_dword v{P+108}, v3, s[{sDBG}:{sDBG+1}] sc1
          s_mov_b64 exec, -1
          L_nonw:"""
        if skewm is not None:
            noncew += f"""
              s_or_b32 s{sT0}, s{sJ}, s{sW}
              s_cbranch_scc1 L_nonw2
              s_lshl_b32 s{sT0}, s{sG}, 2
              v_mov_b32 v4, s{sT0}
              v_mov_b32 v3, s{ST0}
              s_mov_b64 exec, 1
              global_store_dword v4, v3, s[{sDBG}:{sDBG+1}] offset:32 sc1
              s_mov_b64 exec, -1
              L_nonw2:"""
    xld = f"buffer_load_dwordx4 {vr(P,4)}, v7, {srd(R_X)}, 0 offen {xfl}\nbuffer_load_dwordx4 {vr(P+4,4)}, v7, {srd(R_X)}, 0 offen offset:16 {xfl}"
    if nox: xld = f"s_mov_b32 s{R_X+2}, 0\n" + xld
    xcode0 = "" if xlate else xld
    if xpre: xcode0 = "\n".join(f"s_load_dword s{80+k if not stamp else 98}, s[{R_X}:{R_X+1}], {k*128}" for k in range(10))
    XR = P; F = P + 8; XB = P + 24; AW = P + 40; DD = P + 88; T = P + 100; Z = P + 108
    sU, sRB, sSTR = sT3, sT4, sT5
    A(f"""
      v_mov_b32 v{Z}, 0
      v_mov_b32 v{Z+1}, 0
      v_mov_b32 v{Z+2}, 0
      v_mov_b32 v{Z+3}, 0
      s_mul_i32 s{sT0}, s{sW}, {OVS}
      v_and_b32 v2, 1, v0
      v_lshlrev_b32 v2, 4, v2
      ds_write_b128 v2, {vr(Z,4)} offset:{L_CNT}
      v_add_u32 v2, s{sT0}, v2
      ds_write_b128 v2, {vr(Z,4)} offset:{L_OV+480}
      s_waitcnt lgkmcnt(0)
      s_add_u32 s{R_K}, s{sK}, s{sKVO}
      s_addc_u32 s{R_K+1}, s{sK+1}, 0
      {noncew}
      s_cmp_ge_u32 s{sJ}, 30
      s_cbranch_scc1 L_p1skip
      s_mul_i32 s{sT0}, s{sW}, 1280
      s_add_u32 s{R_X}, s{sX}, s{sT0}
      s_addc_u32 s{R_X+1}, s{sX+1}, 0
      s_movk_i32 s{R_X+2}, 1280
      s_mov_b32 s{R_X+3}, 0x20000
      v_lshlrev_b32 v7, 5, v0
      {xcode0}
      s_mul_i32 s{sU}, s{sJ}, 205
      s_lshr_b32 s{sU}, s{sU}, 10
      s_mul_i32 s{sT0}, s{sU}, 5
      s_sub_u32 s{sRB}, s{sJ}, s{sT0}
      s_cmp_eq_u32 s{sU}, 5
      s_cselect_b64 s[{R_W}:{R_W+1}], s[{sW3}:{sW3+1}], s[{sW1}:{sW1+1}]
      s_lshl2_add_u32 s{sT0}, s{sG}, s{sU}
      s_cmp_lt_u32 s{sU}, 4
      s_cselect_b64 s[{R_W}:{R_W+1}], s[{sWQ}:{sWQ+1}], s[{R_W}:{R_W+1}]
      s_cselect_b32 s{sT0}, s{sT0}, s{sG}
      s_cselect_b32 s{sSTR}, 4, 1
      s_mulk_i32 s{sSTR}, 3072
      s_mulk_i32 s{sT0}, 384
      s_lshl2_add_u32 s{sT2}, s{sRB}, s{sW}
      s_mul_i32 s{sT2}, s{sT2}, s{sSTR}
      s_lshl_b32 s{sT2}, s{sT2}, 5
      s_add_u32 s{sT0}, s{sT0}, s{sT2}
      s_add_u32 s{R_W}, s{R_W}, s{sT0}
      s_addc_u32 s{R_W+1}, s{R_W+1}, 0
      s_mul_i32 s{R_W+2}, s{sSTR}, 31
      s_addk_i32 s{R_W+2}, 384
      s_mov_b32 s{R_W+3}, 0x20000
      v_lshlrev_b32 v4, 4, v6
      v_mad_u32_u24 v4, v5, s{sSTR}, v4
      s_lshl_b32 s{sSTR}, s{sSTR}, 3
      s_lshl_b32 s{sT2}, s{sW}, 12
      s_add_u32 m0, s{sT2}, {L_T}
      s_mov_b32 s{sT0}, 0
    """)
    if fake_w:
        A(f"""
          s_lshl_b32 s{sT2}, s2, 2
          s_add_u32 s{sT2}, s{sT2}, s{sW}
          s_mul_i32 s{sT2}, s{sT2}, 12288
          s_add_u32 s{R_W}, s{sK}, s{sT2}
          s_addc_u32 s{R_W+1}, s{sK+1}, 0
          s_mov_b32 s{R_W+2}, 12288
          s_mov_b32 s{sSTR}, 3072
          v_mov_b32 v4, v{vKV}
        """)
    for rg in range(4):
        for sg in range(3):
            A(f"buffer_load_dwordx4 v4, {srd(R_W)}, s{sT0} offen offset:{sg*128} {wfl} lds")
            if sg < 2: A(f"s_add_u32 m0, m0, {16384 - 128}")
        if rg < 3:
            A(f"s_sub_u32 m0, m0, {2*(16384-128) - 1024}"); A(f"s_add_u32 s{sT0}, s{sT0}, s{sSTR}")
        if xlate == rg + 1: A(xld)
    A("s_barrier")
    clrst()
    A(f"""
      s_mul_i32 s{sT6}, s{sG}, {4*pbs}
      {f's_add_u32 s{sT6}, s{sT6}, 0x300000' if pbs != 23040 else ''}
      s_mul_i32 s{sT0}, s{sRB}, 4608
      s_add_u32 s{sT6}, s{sT6}, s{sT0}
      s_lshl2_add_u32 s{sT0}, s{sU}, s{sW}
      s_mulk_i32 s{sT0}, 192
      s_add_u32 s{sT6}, s{sT6}, s{sT0}
      v_lshrrev_b32 v4, 4, v0
      v_and_b32 v2, 3, v0
      v_mul_u32_u24 v3, {XNS}, v2
      v_lshl_add_u32 v3, v4, 4, v3
      s_lshl_b32 s{sT0}, s{sRB}, 8
      v_add_u32 v3, s{sT0}, v3
      v_bfe_u32 v12, v0, 2, 2
      v_mul_u32_u24 v11, {pbs}, v2
      v_lshl_add_u32 v11, v12, 6, v11
      v_lshl_add_u32 v11, v4, 4, v11
      v_lshl_add_u32 v12, v4, 3, v12
      v_lshlrev_b32 v12, 7, v12
      v_lshl_add_u32 v12, v2, 3, v12
      s_mul_i32 s{sT0}, s{sW}, {XNS}
      v_add_u32 v7, s{sT0}, v7
      s_mul_i32 s{sT4}, s{sW}, 3
    """)
    for tt in range(3):
        A(f"""
          s_lshr_b32 s{sT0}, s{sT4}, 2
          s_lshl_b32 s{sT0}, s{sT0}, 14
          s_and_b32 s{sT2}, s{sT4}, 3
          s_lshl_b32 s{sT2}, s{sT2}, 5
          s_add_u32 s{sT0}, s{sT0}, s{sT2}
          s_add_u32 s{sT0}, s{sT0}, {L_T}
          v_add_u32 v{8+tt}, s{sT0}, v12
        """)
        if tt < 2: A(f"s_add_u32 s{sT4}, s{sT4}, 1")
    setup2()
    def red64(r, t):
        for k in (8, 4, 2, 1): A(f"v_add_f32_dpp v{r}, v{r}, v{r} row_ror:{k} {DPPM}")
        A(f"v_mov_b32 v{t}, v{r}"); A(f"v_permlane16_swap_b32 v{r}, v{t}"); A(f"v_add_f32 v{r}, v{r}, v{t}")
        A(f"v_mov_b32 v{t}, v{r}"); A(f"v_permlane32_swap_b32 v{r}, v{t}"); A(f"v_add_f32 v{r}, v{r}, v{t}")
    A(f"v_mov_b32 v{T+2}, 0")
    A(f"s_waitcnt vmcnt({12 - 3*xlate})")
    st(1)
    for k in range(8):
        A(f"v_lshlrev_b32 v{F+2*k}, 16, v{XR+k}"); A(f"v_and_b32 v{F+2*k+1}, s{sHI}, v{XR+k}")
    A(f"v_pk_add_f32 {vr(T,2)}, {vr(F,2)}, {vr(F+2,2)}"); A(f"v_pk_add_f32 {vr(T+4,2)}, {vr(F+4,2)}, {vr(F+6,2)}")
    for k in range(4, 8):
        a = T + 4 * (k & 1); A(f"v_pk_add_f32 {vr(a,2)}, {vr(a,2)}, {vr(F+2*k,2)}")
    A(f"v_pk_add_f32 {vr(T,2)}, {vr(T,2)}, {vr(T+4,2)}"); A(f"v_add_f32 v{T}, v{T}, v{T+1}")
    red64(T, T + 1)
    A(f"v_mul_f32 v{T}, {INV640:#x}, v{T}")
    A("s_mov_b32 exec_hi, 0xff")
    for k in range(8):
        A(f"v_pk_add_f32 {vr(AW+2*k,2)}, {vr(F+2*k,2)}, {vr(T,2)} op_sel_hi:[1,0] neg_lo:[0,1] neg_hi:[0,1]")
    A(f"v_pk_mul_f32 {vr(T+4,2)}, {vr(AW,2)}, {vr(AW,2)}"); A(f"v_pk_mul_f32 {vr(T+6,2)}, {vr(AW+2,2)}, {vr(AW+2,2)}")
    for k in range(2, 8):
        a = T + 4 + 2 * (k & 1); A(f"v_pk_fma_f32 {vr(a,2)}, {vr(AW+2*k,2)}, {vr(AW+2*k,2)}, {vr(a,2)}")
    A(f"v_pk_add_f32 {vr(T+4,2)}, {vr(T+4,2)}, {vr(T+6,2)}"); A(f"v_add_f32 v{T+2}, v{T+4}, v{T+5}")
    A("s_mov_b32 exec_hi, -1")
    red64(T + 2, T + 3)
    A(f"v_mul_f32 v{T+2}, {INV640:#x}, v{T+2}")
    rnd(T, T + 1)
    rnd(T + 2, T + 3); A(f"v_add_f32 v{T+2}, {EPS:#x}, v{T+2}"); rnd(T + 2, T + 3)
    A(f"v_sqrt_f32 v{T+2}, v{T+2}"); rnd(T + 2, T + 3); A(f"v_rcp_f32 v{T+2}, v{T+2}")
    for k in range(8):
        A(f"v_pk_add_f32 {vr(F+2*k,2)}, {vr(F+2*k,2)}, {vr(T,2)} op_sel_hi:[1,0] neg_lo:[0,1] neg_hi:[0,1]")
    for k in range(8): A(f"v_cvt_pk_bf16_f32 v{XR+k}, v{F+2*k}, v{F+2*k+1}")
    for k in range(8):
        A(f"v_lshlrev_b32 v{F+2*k}, 16, v{XR+k}"); A(f"v_and_b32 v{F+2*k+1}, s{sHI}, v{XR+k}")
    for k in range(8):
        A(f"v_pk_mul_f32 {vr(F+2*k,2)}, {vr(F+2*k,2)}, {vr(T+2,2)} op_sel_hi:[1,0]")
    for k in range(8): A(f"v_cvt_pk_bf16_f32 v{XR+k}, v{F+2*k}, v{F+2*k+1}")
    A("s_mov_b32 exec_hi, 0xff")
    A(f"ds_write_b128 v7, {vr(XR,4)} offset:{L_XN}"); A(f"ds_write_b128 v7, {vr(XR+4,4)} offset:{L_XN+16}")
    st(2)
    if nonce:
        A("s_waitcnt vmcnt(3)"); A("s_mov_b64 exec, 1"); A(f"global_load_dword v4, v{Z}, s[{sDBG}:{sDBG+1}] sc1")
    A(f"""
      v_mov_b32 v2, 1
      s_waitcnt vmcnt({1 if nonce else 0}) lgkmcnt(0)
      s_mov_b64 exec, 1
      ds_add_u32 v{Z}, v2 offset:{L_CNT+8}
      s_mov_b64 exec, -1
    """)
    if not nonce: tags()
    A("v_mov_b32 v7, 0xffffff00")
    lds_spin("L_spin0", L_CNT + 8, "eq", 4, 1, va=Z)
    for s_ in range(4):
        A(f"ds_read_b128 {vr(XB+4*s_,4)}, v3 offset:{L_XN + s_*64}")
        for tt in range(3):
            for hh in range(2):
                r = AW + (s_ * 3 + tt) * 4 + 2 * hh
                A(f"ds_read_b64_tr_b16 {vr(r,2)}, v{8+tt} offset:{s_*4096 + hh*512}")
    for s_ in range(4):
        A(f"s_waitcnt lgkmcnt({min(14, 7*(3-s_))})")
        for tt in range(3):
            c = "0" if s_ == 0 else vr(DD + 4*tt, 4)
            A(f"v_mfma_f32_16x16x32_bf16 {vr(DD+4*tt,4)}, {vr(AW+(s_*3+tt)*4,4)}, {vr(XB+4*s_,4)}, {c}")
    for tt in range(1, 3):
        m = 0x000f000f << (4 * tt)
        setexec(m, m)
        for r in range(4): A(f"v_mov_b32 v{DD+r}, v{DD+4*tt+r}")
    if nonce:
        fullexec(); A("s_waitcnt vmcnt(0)"); A(f"v_readfirstlane_b32 s{sEP}, v4"); tags()
    setexec(0x0fff0fff, 0x0fff0fff)
    for r in range(4): A(f"v_add_u32 v{R+r}, 0x80, v{DD+r}")
    tag4(R, 7)
    if pclean: A(f"s_mov_b32 s40, s{sT6}")
    if not nopart: A(f"buffer_store_dwordx4 {vr(R,4)}, v11, {srd(R_WS)}, s{sT6} offen {pst}")
    fullexec()
    st(3)
    A("s_branch L_p1done")
    A.label("L_p1skip")
    if pclean: A("s_mov_b32 s40, 2.0")
    A("s_barrier")
    clrst()
    A.label("L_p1done")
    if gate: A("s_barrier")
    A("s_setprio 1")
    if krel or slowj: A("s_mov_b64 vcc, 0")
    for n in range(early):
        kload(n, R_K); kstamp(n)
    A("s_branch L_krest")
    A.label("L_kdone")
    if stamp and not prof and late is None:
        A(f"s_cmp_lt_u32 s{sW}, 4"); A("s_cbranch_scc1 L_noclr"); clrst(); A.label("L_noclr")
    assert lwo != 5
    if nonce: A(f"s_load_dword s{sEP}, s[{sDBG}:{sDBG+1}], 0")
    if gk: st(4); A("s_barrier")
    setup2()
    A("s_waitcnt lgkmcnt(0)")
    tags()
    if lwo == 5: A("s_branch L_dma_done")
    A.label("L_dma")
    if lwo < 10 and not wfirst:
        dma_addr(); dma(sW)
    A.label("L_dma_done")
    if not gk: st(4)
    if gate and not gk: A("s_barrier")
    if rank3:
        if rank3["thr"][0] < 99: A(f"s_cmp_eq_u32 s{sW}, 6"); A("s_cbranch_scc1 L_rk0")
        if rank3["thr"][1] < 99: A(f"s_cmp_eq_u32 s{sW}, 2"); A("s_cbranch_scc1 L_rk1")
    A(f"s_cmp_eq_u32 s{sW}, 7"); A("s_cbranch_scc1 L_gather")
    A.label("L_waitq")
    A(f"v_and_b32 v6, 7, v0"); A(f"v_lshlrev_b32 v7, 4, v6")
    for i in range(16): A(f"v_mov_b32 v{S+i}, 0")
    A(f"v_and_b32 v3, 1, v0"); A(f"v_lshlrev_b32 v3, 4, v3"); A(f"v_mov_b32 v4, 0xffff"); A(f"v_lshlrev_b32 v3, v3, v4")
    A(f"v_lshrrev_b32 v4, 1, v6")
    for jx in range(4):
        A(f"v_cmp_eq_u32 vcc, {jx}, v4"); A(f"v_cndmask_b32 v{MK+jx}, 0, v3, vcc")
    A("v_mov_b32 v5, 0")
    lds_spin("L_spinq", L_CNT, "eq", 1, 4)
    st(6)
    for jx in range(3): A(f"ds_read_b128 {vr(Q+4*jx,4)}, v7 offset:{L_Q + jx*128}")
    A("s_waitcnt lgkmcnt(0)")
    for k in range(8):
        A(f"s_waitcnt vmcnt({(42 if (lwo or wfirst) else 47) - 6*k})")
        for m in range(12):
            for z in range(2):
                i = 2 * k + z
                A(f"v_dot2c_f32_bf16 v{S+i}, v{P + 12*i + m}, v{Q+m}")
    for mode in ("quad_perm:[1,0,3,2]", "quad_perm:[2,3,0,1]", "row_half_mirror"):
        for i in range(16): A(f"v_add_f32_dpp v{S+i}, v{S+i}, v{S+i} {mode} {DPPM}")
    A(f"s_mov_b32 s{sT1}, {SCALE:#x}")
    for k in range(8): A(f"v_cvt_pk_bf16_f32 v{AT+k}, v{S+2*k}, v{S+2*k+1}")
    for k in range(8):
        A(f"v_lshlrev_b32 v{S+2*k}, 16, v{AT+k}"); A(f"v_and_b32 v{S+2*k+1}, s{sHI}, v{AT+k}")
    for i in range(16): A(f"v_mul_f32 v{S+i}, s{sT1}, v{S+i}")
    for k in range(8): A(f"v_cvt_pk_bf16_f32 v{AT+k}, v{S+2*k}, v{S+2*k+1}")
    for k in range(8):
        A(f"v_lshlrev_b32 v{S+2*k}, 16, v{AT+k}"); A(f"v_and_b32 v{S+2*k+1}, s{sHI}, v{AT+k}")
    A(f"v_max3_f32 v2, v{S}, v{S+1}, v{S+2}"); A(f"v_max3_f32 v3, v{S+3}, v{S+4}, v{S+5}")
    A(f"v_max3_f32 v2, v2, v{S+6}, v{S+7}"); A(f"v_max3_f32 v3, v3, v{S+8}, v{S+9}")
    A(f"v_max3_f32 v2, v2, v{S+10}, v{S+11}"); A(f"v_max3_f32 v3, v3, v{S+12}, v{S+13}")
    A(f"v_max3_f32 v2, v2, v{S+14}, v{S+15}"); A(f"v_max_f32 v2, v2, v3")
    xlane("v_max_f32", 2, 3)
    if steal:
        A(f"""
          s_cmp_ge_u32 s{sW}, 4
          s_cbranch_scc1 L_nosc
          s_lshl_b32 s{sT0}, s{sW}, 8
          v_lshlrev_b32 v3, 2, v0
          v_add_u32 v3, s{sT0}, v3
        """)
        setexec(0x01010101, 0x01010101)
        A(f"ds_write_b128 v3, {vr(S+8,4)} offset:{L_SC}"); A(f"ds_write_b128 v3, {vr(S+12,4)} offset:{L_SC+16}")
        fullexec()
        A.label("L_nosc")
    A(f"""
      s_lshl_b32 s{sT0}, s{sW}, 2
      v_mov_b32 v3, s{sT0}
      v_mov_b32 v4, 1
      s_waitcnt vmcnt(0)
      s_mov_b64 exec, 1
      ds_write_b32 v3, v2 offset:{L_M}
      ds_add_u32 v5, v4 offset:{L_CNT+4}
      s_mov_b64 exec, -1
    """)
    def wgmax(dst, tt=3, AT=AT):
        A(f"""
          ds_read_b128 {vr(AT,4)}, v5 offset:{L_M}
          ds_read_b128 {vr(AT+4,4)}, v5 offset:{L_M+16}
          s_waitcnt lgkmcnt(0)
          v_max3_f32 v{dst}, v{AT}, v{AT+1}, v{AT+2}
          v_max3_f32 v{tt}, v{AT+3}, v{AT+4}, v{AT+5}
          v_max3_f32 v{dst}, v{dst}, v{AT+6}, v{AT+7}
          v_max_f32 v{dst}, v{dst}, v{tt}
        """)
    if steal:
        A(f"s_cmp_eq_u32 s{sW}, 0"); A("s_cbranch_scc1 L_pubsc")
        A(f"s_cmp_eq_u32 s{sW}, 1"); A("s_cbranch_scc1 L_dec")
        A.label("L_pubsc_done")
    WA = P; OB = P + 32; A0 = P + 64; A1 = P + 68; O = P + 72; Y = P + 72
    PA = P + 140; PB = P + 160
    def prep():
        A(f"""
          s_min_u32 s{sT0}, s{sTW}, 4
          s_lshl_b32 s{sT1}, s{sT0}, 5
          s_add_u32 s{sT1}, s{sT1}, {L_WO}
          v_lshrrev_b32 v16, 4, v0
          v_bfe_u32 v2, v0, 2, 2
          v_and_b32 v3, 3, v0
          v_mul_u32_u24 v2, 160, v2
          v_lshl_add_u32 v2, v3, 3, v2
          v_add_u32 v2, s{sT1}, v2
          v_and_b32 v15, 1, v16
          v_mul_u32_u24 v15, 1280, v15
          v_add_u32 v15, v15, v2
          v_mul_u32_u24 v6, 1280, v16
          v_add_u32 v2, v6, v2
        """)
        if ilv: A("v_mov_b32 v11, v2"); A("v_mov_b32 v12, v15")
        elif lwo: A("v_mov_b32 v20, v2"); A("v_mov_b32 v21, v15")
        else:
            for s in range(8):
                for hh in range(2):
                    A(f"ds_read_b64_tr_b16 {vr(WA+4*s+2*hh,2)}, v{15 if s == 7 else 2} offset:{s*5120 + hh*640}")
        A(f"""
          v_mul_u32_u24 v6, {OVS}, v3
          v_lshl_add_u32 v6, v16, 4, v6
          s_mul_i32 s{sT6}, s{sC}, 40960
          s_add_u32 s{sT6}, s{sT6}, {WS_YP}
        """)
        if ylay:
            A(f"""
              v_mul_u32_u24 v7, 81920, v3
              v_lshl_add_u32 v7, v16, 4, v7
              s_mul_i32 s{sT1}, s{sC}, 5
              s_add_u32 s{sT0}, s{sT0}, s{sT1}
              s_lshr_b32 s{sT1}, s{sT0}, 1
              s_lshl_b32 s{sT3}, s{sT1}, 12
              s_and_b32 s{sT1}, s{sT0}, 1
              s_lshl1_add_u32 s{sT1}, s{sH}, s{sT1}
              s_lshl_b32 s{sT1}, s{sT1}, 6
              s_add_u32 s{sT3}, s{sT3}, s{sT1}
              s_add_u32 s{sT3}, s{sT3}, {WS_YP}
            """)
        else:
            A(f"""
              v_lshrrev_b32 v7, 1, v3
              v_lshlrev_b32 v7, 12, v7
              v_and_b32 v15, 1, v0
              v_lshl_add_u32 v7, v15, 6, v7
              v_lshl_add_u32 v7, v16, 4, v7
              s_lshl_b32 s{sT1}, s{sH}, 7
              s_add_u32 s{sT3}, s{sT6}, s{sT1}
              s_lshl_b32 s{sT1}, s{sT0}, 13
              s_add_u32 s{sT3}, s{sT3}, s{sT1}
            """)
        recoff(sT2, sT1)
        A(f"""
          s_min_u32 s{sT5}, s{sTW}, 3
          s_lshl2_add_u32 s{sT4}, s{sH}, s{sT5}
          s_lshl_b32 s{sT4}, s{sT4}, 11
          s_add_u32 s{sT4}, s{sT4}, {WS_REC}
          v_lshlrev_b32 v2, 4, v0
          s_mul_i32 s{sT1}, s{sT5}, {OVS}
          v_lshlrev_b32 v3, 3, v0
          v_add_u32 v3, s{sT1}, v3
          v_mov_b32 v8, 1.0
          v_mov_b32 v9, 0
          v_mov_b32 v18, 0xffffff00
          v_mov_b32 v19, {LOG2E:#x}
        """)
    def mkA(i, a):
        for jx in range(4): A(f"v_and_b32 v{a+jx}, v{S+i}, v{MK+jx}")
    if ilv:
        assert gate and not steal
        A(f"""
          s_cmp_lt_u32 s{sW}, 4
          s_cselect_b64 vcc, -1, 0
          s_cselect_b32 s{sT1}, 8, 4
          s_cselect_b32 s{sT2}, 0, 16
        """)
        lds_spin("L_spinm", L_CNT + 4, "ge", f"s{sT1}", 2)
        A(f"""
          v_mov_b32 v3, s{sT2}
          ds_read_b128 {vr(AT,4)}, v3 offset:{L_M}
          ds_read_b128 {vr(AT+4,4)}, v5 offset:{L_M+16}
          s_mov_b32 s{sT1}, {LOG2E:#x}
          s_waitcnt lgkmcnt(0)
          v_max3_f32 v17, v{AT}, v{AT+1}, v{AT+2}
          v_max3_f32 v3, v{AT+3}, v{AT+4}, v{AT+5}
          v_max3_f32 v17, v17, v{AT+6}, v{AT+7}
          v_max_f32 v17, v17, v3
        """)
        for i in range(16): A(f"v_sub_f32 v{S+i}, v{S+i}, v17")
        for i in range(16): A(f"v_mul_f32 v{S+i}, s{sT1}, v{S+i}")
        for i in range(16): A(f"v_exp_f32 v{S+i}, v{S+i}")
        A(f"v_pk_add_f32 {vr(AT,2)}, {vr(S,2)}, {vr(S+2,2)}"); A(f"v_pk_add_f32 {vr(AT+2,2)}, {vr(S+4,2)}, {vr(S+6,2)}")
        A(f"v_pk_add_f32 {vr(AT+4,2)}, {vr(S+8,2)}, {vr(S+10,2)}"); A(f"v_pk_add_f32 {vr(AT+6,2)}, {vr(S+12,2)}, {vr(S+14,2)}")
        A(f"v_pk_add_f32 {vr(AT,2)}, {vr(AT,2)}, {vr(AT+2,2)}"); A(f"v_pk_add_f32 {vr(AT+4,2)}, {vr(AT+4,2)}, {vr(AT+6,2)}")
        A(f"v_pk_add_f32 {vr(AT,2)}, {vr(AT,2)}, {vr(AT+4,2)}"); A(f"v_add_f32 v14, v{AT}, v{AT+1}")
        for i in range(16): A(f"v_cvt_pk_bf16_f32 v{S+i}, v{S+i}, v{S+i}")
        xlane("v_add_f32", 14, 4)
        mcode = f"v_mov_b32 v15, v17\ns_cmp_lg_u32 s{sW}, 0\ns_cselect_b64 exec, 3, 2\nv_mov_b32 v15, 0" if cons2 else ""
        A(f"""
          s_mul_i32 s{sT0}, s{sW}, {2*OPS}
          v_mul_u32_u24 v13, {OPS}, v0
          v_add_u32 v13, s{sT0}, v13
          {mcode}
          s_mov_b64 exec, 2
          v_mov_b32 v14, 0
          s_mov_b64 exec, 3
          {"ds_write_b64 v13, v[14:15]" if cons2 else "ds_write_b32 v13, v14"} offset:{L_OP + 54*16}
          s_mov_b64 exec, -1
          v_lshrrev_b32 v4, 5, v0
          v_mul_u32_u24 v4, {OPS}, v4
          v_lshl_add_u32 v4, v6, {4 if opl else 5}, v4
          v_bfe_u32 v7, v0, 4, 1
          v_lshl_add_u32 v4, v7, {7 if opl else 4}, v4
          v_add_u32 v4, s{sT0}, v4
        """)
        prep()
        if opl:
            A(f"""
              v_mov_b32 v9, v2
              s_mov_b32 exec_hi, 0xffff
              v_and_b32 v9, 0x300, v2
              v_and_b32 v10, 1, v0
              v_lshl_add_u32 v9, v10, 7, v9
              v_bfe_u32 v10, v0, 1, 3
              v_lshl_add_u32 v9, v10, 4, v9
              s_mov_b32 exec_hi, -1
            """)
        if early5:
            A(f"s_cmp_eq_u32 s{sTW}, 5"); A("s_cbranch_scc1 L_red0")
            A.label("L_red0_done")
        if rank:
            A(f"s_cmp_eq_u32 s{sW}, 2"); A("s_cbranch_scc1 L_rank")
            A.label("L_rank_done")
        A("s_setprio 0"); A("s_cbranch_vccnz L_vissue"); A("s_setprio 1")
        A.label("L_vissue")
        A("s_waitcnt lgkmcnt(0)"); A("s_barrier")
        st(7)
        if rank or rank2 or rank3: A(f"ds_read_b32 v10, v5 offset:{L_CNT+12}")
        def pvit(i, cnt):
            a = AT + 4 * (i & 1)
            mkA(i, a)
            A("s_nop 0")
            A(f"s_waitcnt vmcnt({cnt})")
            for jx in range(3):
                c = "0" if i == 0 else vr(D + 4*jx, 4)
                A(f"v_mfma_f32_16x16x32_bf16 {vr(D+4*jx,4)}, {vr(a,4)}, {vr(P+12*i+4*jx,4)}, {c}")
        for n in range(48):
            if rank and n == 3: A("s_waitcnt lgkmcnt(0)"); A(f"v_readfirstlane_b32 s{sSTP}, v10"); A(f"s_mov_b32 s{sLIM}, s{sSTP}")
            kload(n, R_V)
            if n % 12 == 11: st(5 + n // 12, True)
            if rank and n == rank[2]:
                A(f"s_cmp_lg_u32 s{sW}, 7"); A("s_cbranch_scc1 L_nock")
                A(f"ds_write_b32 v5, v8 offset:{L_CNT+24}")
                A.label("L_nock")
            if lwo and n == lsig:
                A("s_cbranch_vccz L_nosig"); A("s_mov_b64 exec, 1"); A(f"ds_add_f32 v5, v8 offset:{L_CNT+24}"); A("s_mov_b64 exec, -1"); A.label("L_nosig")
            if n % 3 == 2 and n // 3 >= ilv and n < 47: pvit(n // 3 - ilv, 3 * ilv)
        if stamp and (rank2 or rank3): A(f"s_mov_b32 s{sLIM}, s{sSTP}")
        A("s_cbranch_vccnz L_nogate3"); A("s_barrier")
        if rank2: A(f"s_cmp_eq_u32 s{sW}, 6"); A("s_cbranch_scc1 L_rank2")
        if rank3: A(f"s_cmp_eq_u32 s{sW}, 6"); A("s_cbranch_scc1 L_rk2")
        A.label("L_nogate3")
        for s_ in range(3 if lwo else 8):
            for hh in range(2):
                A(f"ds_read_b64_tr_b16 {vr(WA+4*s_+2*hh,2)}, v{12 if s_ == 7 else 11} offset:{s_*5120 + hh*640}")
        for i in range(15 - ilv, 16): pvit(i, 45 - 3 * i)
        A("s_cbranch_vccnz L_noresc")
        wgmax(10, 15, S + 4)
        A(f"""
          v_sub_f32 v16, v17, v10
          v_mul_f32 v16, v19, v16
          v_exp_f32 v16, v16
        """)
        setexec(0, 0x00800000)
        A(f"v_mov_b32 v{R}, v10")
        fullexec()
        A("v_mul_f32 v14, v16, v14")
        for k in range(6): A(f"v_pk_mul_f32 {vr(D+2*k,2)}, {vr(D+2*k,2)}, v[16:17] op_sel_hi:[1,0]")
        A("s_mov_b64 exec, 3")
        A(f"ds_write_b32 v13, v14 offset:{L_OP + 54*16}")
        A.label("L_noresc")
    else:
        A(f"""
          s_setprio 0
          s_cmp_lt_u32 s{sW}, 4
          s_cselect_b64 vcc, -1, 0
          s_cbranch_scc1 L_vissue
          s_setprio 1
        """)
        A.label("L_vissue")
        if gate: A("s_waitcnt lgkmcnt(0)"); A("s_barrier")
        st(7)
        for n in range(48):
            if steal and n == 3 * (16 - gmax):
                A("s_cbranch_vccz L_nogive")
                lds_spin("L_sping", L_CNT + 12, "lg", 0, 2, sd=sLIM)
                A(f"s_sub_u32 s{sLIM}, 17, s{sLIM}")
                A.label("L_nogive")
            kload(n, R_V)
            if n % 12 == 11: st(5 + n // 12, True)
            if steal and n == tsat:
                A(f"s_cmp_lg_u32 s{sW}, 7"); A("s_cbranch_scc1 L_nock")
                A(f"ds_write_b32 v5, v4 offset:{L_CNT+24}")
                A.label("L_nock")
        if False: pass
        elif gate:
            A("s_cbranch_vccnz L_nogate3"); A("s_barrier"); A.label("L_nogate3")
        if steal:
            A(f"s_cmp_eq_u32 s{sW}, 7"); A("s_cbranch_scc1 L_xchg")
            A.label("L_xchg_done")
            lds_spin("L_spinm", L_CNT + 4, "eq", 9, 2)
            A(f"ds_read_b32 v2, v5 offset:{L_CNT+20}"); A("s_waitcnt lgkmcnt(0)")
            A("v_mov_b32 v17, v2")
        else:
            lds_spin("L_spinm", L_CNT + 4, "eq", 8, 2)
            wgmax(2)
            setexec(0, 0x00800000)
            A(f"v_mov_b32 v{R}, v2")
            fullexec()
        A(f"s_mov_b32 s{sT1}, {LOG2E:#x}")
        for i in range(16): A(f"v_sub_f32 v{S+i}, v{S+i}, v2")
        for i in range(16): A(f"v_mul_f32 v{S+i}, s{sT1}, v{S+i}")
        for i in range(16): A(f"v_exp_f32 v{S+i}, v{S+i}")
        A(f"v_pk_add_f32 {vr(AT,2)}, {vr(S,2)}, {vr(S+2,2)}"); A(f"v_pk_add_f32 {vr(AT+2,2)}, {vr(S+4,2)}, {vr(S+6,2)}")
        A(f"v_pk_add_f32 {vr(AT+4,2)}, {vr(S+8,2)}, {vr(S+10,2)}"); A(f"v_pk_add_f32 {vr(AT+6,2)}, {vr(S+12,2)}, {vr(S+14,2)}")
        A(f"v_pk_add_f32 {vr(AT,2)}, {vr(AT,2)}, {vr(AT+2,2)}"); A(f"v_pk_add_f32 {vr(AT+4,2)}, {vr(AT+4,2)}, {vr(AT+6,2)}")
        A(f"v_pk_add_f32 {vr(AT,2)}, {vr(AT,2)}, {vr(AT+4,2)}"); A(f"v_add_f32 v3, v{AT}, v{AT+1}")
        for i in range(16): A(f"v_cvt_pk_bf16_f32 v{S+i}, v{S+i}, v{S+i}")
        xlane("v_add_f32", 3, 4)
        A(f"""
          s_mul_i32 s{sT0}, s{sW}, {2*OPS}
          v_mul_u32_u24 v4, {OPS}, v0
          v_add_u32 v4, s{sT0}, v4
          s_mov_b64 exec, 2
          v_mov_b32 v3, 0
          s_mov_b64 exec, 3
          ds_write_b32 v4, v3 offset:{L_OP + 54*16}
          s_mov_b64 exec, -1
          v_lshrrev_b32 v4, 5, v0
          v_mul_u32_u24 v4, {OPS}, v4
          v_lshl_add_u32 v4, v6, 5, v4
          v_bfe_u32 v7, v0, 4, 1
          v_lshl_add_u32 v4, v7, 4, v4
          v_add_u32 v4, s{sT0}, v4
        """)
        mkA(0, AT)
        for i in range(16):
            if i < 15: mkA(i + 1, AT + 4 * ((i + 1) & 1))
            if i == prep_at: prep()
            A(f"s_waitcnt vmcnt({45 - 3*i})")
            a = AT + 4 * (i & 1)
            for jx in range(3):
                c = "0" if i == 0 else vr(D + 4*jx, 4)
                A(f"v_mfma_f32_16x16x32_bf16 {vr(D+4*jx,4)}, {vr(a,4)}, {vr(P+12*i+4*jx,4)}, {c}")
        if steal:
            A(f"s_cmp_ge_u32 s{sW}, 4"); A("s_cbranch_scc1 L_steal")
            A.label("L_steal_done")
    st(8); st(9, True)
    if late is not None:
        A(f"s_load_dword s98, s[{sDBG}:{sDBG+1}], 0"); A("s_waitcnt lgkmcnt(0)")
        A("s_cmp_lg_u32 s98, 0"); A("s_cbranch_scc1 L_nolate")
        A(f"s_cmp_ge_u32 s{sW}, 4"); A("s_cbranch_scc1 L_nolate")
        if late >= 0: A(f"s_cmp_lg_u32 s2, {late}"); A("s_cbranch_scc1 L_nolate")
        A.label("L_late")
        A("s_memrealtime s[100:101]"); A("s_waitcnt lgkmcnt(0)")
        A(f"s_sub_u32 s100, s100, s{ST0}"); A(f"s_cmp_lt_u32 s100, 6000"); A("s_cbranch_scc1 L_late")
        A.label("L_nolate")
        if tp:
            for i in range(1, 9): A(f"s_mov_b64 s[{ST0+2*i}:{ST0+2*i+1}], 0")
        tpst(1)
    setexec(0x00ff00ff, 0xff00ff00)
    A("s_nop 4")
    for jx in range(3): A(f"ds_write_b128 v4, {vr(D+4*jx,4)} offset:{L_OP + jx*256}")
    PS = P + 172
    if presum:
        A(f"s_cmp_lt_u32 s{sW}, 4"); A("s_cbranch_scc1 L_nops")
        if warmr:
            setexec(0xffffffff, 0x00ffffff)
            A(f"s_add_u32 s{sT0}, s{sT4}, {(0x1A0000 - WS_REC) if fast else 0}")
            A(f"buffer_load_dwordx4 {vr(A0,4)}, v2, {srd(R_WS)}, s{sT0} offen sc1")
            A(f"buffer_load_dwordx4 {vr(A1,4)}, v2, {srd(R_WS)}, s{sT0} offen offset:1024 sc1")
        A("s_mov_b64 exec, 1"); A("v_mov_b32 v10, 1"); A(f"ds_add_u32 v5, v10 offset:{L_CNT+28}")
        A(f"s_cmp_lg_u32 s{sW}, 7"); A("s_cbranch_scc1 L_nops")
        lds_spin("L_spinps", L_CNT + 28, "eq", 4, 2, vt=10)
        setexec(0xffffffff, 0x0040ffff)
        for k in range(8): A(f"ds_read_b128 {vr(O+4*k,4)}, v{9 if opl else 2} offset:{L_OP + (8+k)*OPS}")
        A("s_waitcnt lgkmcnt(0)")
        for k in range(1, 8):
            for z in (0, 2): A(f"v_pk_add_f32 {vr((PS if k == 7 else O)+z,2)}, {vr(O+z,2)}, {vr(O+4*k+z,2)}")
        A.label("L_nops")
    if lwo:
        fullexec()
        if ilv: A("v_mov_b32 v20, v11"); A("v_mov_b32 v21, v12")
        A(f"s_cmp_lt_u32 s{sW}, 4"); A("s_cbranch_scc1 L_nolwo")
        if ilv: lds_spin("L_spinw", L_CNT + 24, "ge", "4.0" if lsig >= 0 else "0", 1, vt=10)
        else: A("s_setprio 0")
        dma_addr(10, 11); dma(sW, 10)
        if lwo == 10: dma(sTW, 10)
        A("s_setprio 1")
        A.label("L_nolwo")
    A(f"s_cmp_lg_u32 s{sW}, 7")
    setexec(0xffffffff, 0x0040ffff)
    A("s_waitcnt lgkmcnt(0)")
    A("s_barrier")
    RECHI = 0x007fffff if steal else 0x00ffffff
    tpst(2)
    A("s_cbranch_scc1 L_notgw")
    if presum:
        for k in range(8): A(f"ds_read_b128 {vr(O+4*k,4)}, v{9 if opl else 2} offset:{L_OP + k*OPS}")
        for k in range(0, 8, 2):
            A(f"s_waitcnt lgkmcnt({6 - k})")
            for z in (0, 2): A(f"v_pk_add_f32 {vr(O+4*k+z,2)}, {vr(O+4*k+z,2)}, {vr(O+4*k+4+z,2)}")
            for z in (0, 2): A(f"v_pk_add_f32 {vr((R if k == 6 else PS)+z,2)}, {vr(PS+z,2)}, {vr(O+4*k+z,2)}")
    else:
        for k in range(16): A(f"ds_read_b128 {vr(O+4*k,4)}, v2 offset:{L_OP + k*OPS}")
        for k in range(0, 16, 2):
            A(f"s_waitcnt lgkmcnt({14 - k})")
            for z in (0, 2): A(f"v_pk_add_f32 {vr(O+4*k+z,2)}, {vr(O+4*k+z,2)}, {vr(O+4*k+4+z,2)}")
            if k % 4 == 2:
                for z in (0, 2): A(f"v_pk_add_f32 {vr(O+4*(k-2)+z,2)}, {vr(O+4*(k-2)+z,2)}, {vr(O+4*k+z,2)}")
            if k % 8 == 6:
                for z in (0, 2): A(f"v_pk_add_f32 {vr(O+4*(k-6)+z,2)}, {vr(O+4*(k-6)+z,2)}, {vr(O+4*(k-2)+z,2)}")
        for z in (0, 2): A(f"v_pk_add_f32 {vr(R+z,2)}, {vr(O+z,2)}, {vr(O+32+z,2)}")
    A("s_mov_b32 exec_hi, 0x00ffffff")
    tag4(R, 18)
    if fast:
        A(f"s_add_u32 s{sT0}, s{sT2}, {0x1A0000 - WS_REC}"); A(f"buffer_store_dwordx4 {vr(R,4)}, v2, {srd(R_WS)}, s{sT0} offen {f2fl}")
    A(f"buffer_store_dwordx4 {vr(R,4)}, v2, {srd(R_WS)}, s{sT2} offen sc1")
    st(5); tpst(3)
    if lwo: A("s_waitcnt vmcnt(1)")
    A("s_branch L_bar4")
    A.label("L_notgw")
    A("s_mov_b32 exec_hi, 0x00ffffff")
    A(f"s_cmp_gt_u32 s{sTW}, 3"); A("s_cbranch_scc1 L_tw4")
    A.label("L_cons")
    if pp2: A(f"s_sleep {pp2}")
    sP = sT4
    if fast:
        sP = sT1
        A(f"s_add_u32 s{sT2}, s{sT4}, {0x1A0000 - WS_REC}"); A(f"s_mov_b32 s{sT1}, s{sT2}"); A(f"s_mov_b32 s{sT0}, 0")
    A.label("L_poll2")
    A(f"buffer_load_dwordx4 {vr(A0,4)}, v2, {srd(R_WS)}, s{sP} offen sc1")
    A(f"buffer_load_dwordx4 {vr(A1,4)}, v2, {srd(R_WS)}, s{sP} offen offset:1024 sc1")
    A(f"s_waitcnt vmcnt(1)")
    untag(A0, A0, 4)
    A(f"v_or3_b32 v10, v{A0}, v{A0+1}, v{A0+2}")
    A(f"s_waitcnt vmcnt(0)")
    untag(A1, A1, 4)
    A(f"""
      v_or3_b32 v11, v{A1}, v{A1+1}, v{A1+2}
      v_or3_b32 v10, v10, v{A0+3}, v{A1+3}
      v_or_b32 v10, v10, v11
      v_and_b32 v10, 0xff, v10
      v_cmp_ne_u32 vcc, 0, v10
    """)
    if steal:
        A(f"""
          v_cvt_pk_bf16_f32 v14, v{A1}, v{A1+1}
          v_cvt_pk_bf16_f32 v15, v{A1+2}, v{A1+3}
          s_mov_b32 exec_hi, 0x0040ffff
          v_pk_add_f32 {vr(A0,2)}, {vr(A0,2)}, {vr(A1,2)}
          v_pk_add_f32 {vr(A0+2,2)}, {vr(A0+2,2)}, {vr(A1+2,2)}
          s_mov_b32 exec_hi, 0x00ffffff
          s_cmp_lg_u64 vcc, 0
          s_cbranch_scc1 L_poll2_retry
        """)
        st(9)
        A(f"""
          v_readlane_b32 s{sT0}, v{A0}, 54
          s_mov_b32 exec_lo, 0
          s_mov_b32 exec_hi, 0x003f0000
          ds_write_b64 v3, v[14:15] offset:{L_OV + 48}
          s_mov_b32 exec_lo, -1
          s_mov_b32 exec_hi, 0x0000ffff
          v_rcp_f32 v8, s{sT0}
          s_mov_b32 exec_hi, 0x003fffff
          v_pk_mul_f32 {vr(A0,2)}, {vr(A0,2)}, v[8:9] op_sel_hi:[1,0]
          v_pk_mul_f32 {vr(A0+2,2)}, {vr(A0+2,2)}, v[8:9] op_sel_hi:[1,0]
          v_cvt_pk_bf16_f32 v16, v{A0}, v{A0+1}
          v_cvt_pk_bf16_f32 v17, v{A0+2}, v{A0+3}
          ds_write_b64 v3, v[16:17] offset:{L_OV}
        """)
    elif cons2:
        E = S
        A(f"""
          v_sub_f32 v{E}, v{A0+1}, v{A1+1}
          v_cvt_pk_bf16_f32 v14, v{A1}, v{A1+1}
          v_mul_f32 v{E}, v19, v{E}
          v_cvt_pk_bf16_f32 v15, v{A1+2}, v{A1+3}
          v_min_f32 v{E+1}, 0, v{E}
          v_min_f32_e64 v{E+2}, 0, -v{E}
          s_cmp_lg_u64 vcc, 0
          s_cbranch_scc1 L_poll2_retry
        """)
        st(9); tpst(4)
        A(f"""
          v_exp_f32 v{E+1}, v{E+1}
          v_exp_f32 v{E+2}, v{E+2}
          v_cvt_pk_bf16_f32 v16, v{A0}, v{A0+1}
          v_mul_f32 v9, v{E+1}, v{A0}
          v_readlane_b32 s4, v{E+1}, 54
          v_fmac_f32 v9, v{E+2}, v{A1}
          v_readlane_b32 s6, v{E+2}, 54
          v_rcp_f32 v9, v9
          v_cvt_pk_bf16_f32 v17, v{A0+2}, v{A0+3}
          v_pk_mul_f32 {vr(A0,2)}, {vr(A0,2)}, s[4:5] op_sel_hi:[1,0]
          v_readlane_b32 s8, v9, 54
          v_pk_mul_f32 {vr(A0+2,2)}, {vr(A0+2,2)}, s[4:5] op_sel_hi:[1,0]
          v_pk_fma_f32 {vr(A0,2)}, {vr(A1,2)}, s[6:7], {vr(A0,2)} op_sel_hi:[1,0,1]
          v_pk_fma_f32 {vr(A0+2,2)}, {vr(A1+2,2)}, s[6:7], {vr(A0+2,2)} op_sel_hi:[1,0,1]
          s_mov_b32 exec_hi, 0x0000ffff
          v_pk_mul_f32 {vr(A0,2)}, {vr(A0,2)}, s[8:9] op_sel_hi:[1,0]
          v_pk_mul_f32 {vr(A0+2,2)}, {vr(A0+2,2)}, s[8:9] op_sel_hi:[1,0]
          v_cvt_pk_bf16_f32 v16, v{A0}, v{A0+1}
          v_cvt_pk_bf16_f32 v17, v{A0+2}, v{A0+3}
          s_mov_b32 exec_hi, 0x003fffff
          ds_write_b64 v3, v[16:17] offset:{L_OV}
          s_mov_b32 exec_lo, 0
          s_mov_b32 exec_hi, 0x003f0000
          ds_write_b64 v3, v[14:15] offset:{L_OV + 48}
        """)
    else:
        A("s_cmp_lg_u64 vcc, 0"); A("s_cbranch_scc1 L_poll2_retry")
        st(9)
        A(f"""
          v_readlane_b32 s{sT0}, v{A0}, 55
          v_readlane_b32 s{sT1}, v{A1}, 55
          v_readlane_b32 s{sT2}, v{A0}, 54
          v_readlane_b32 s{sT4}, v{A1}, 54
          v_cvt_pk_bf16_f32 v14, v{A1}, v{A1+1}
          v_cvt_pk_bf16_f32 v15, v{A1+2}, v{A1+3}
          v_mov_b32 v10, s{sT0}
          v_max_f32 v12, s{sT1}, v10
          v_sub_f32 v10, v10, v12
          v_sub_f32 v11, s{sT1}, v12
          v_mul_f32 v10, v19, v10
          v_mul_f32 v11, v19, v11
          v_exp_f32 v10, v10
          v_exp_f32 v11, v11
          s_mov_b32 exec_lo, 0
          s_mov_b32 exec_hi, 0x003f0000
          ds_write_b64 v3, v[14:15] offset:{L_OV + 48}
          s_mov_b32 exec_lo, -1
          s_mov_b32 exec_hi, 0x0000ffff
          v_mul_f32 v12, s{sT2}, v10
          v_fma_f32 v12, v11, s{sT4}, v12
          v_rcp_f32 v12, v12
          v_mul_f32 v8, v10, v12
          v_mul_f32 v9, v11, v12
          s_mov_b32 exec_hi, 0x003fffff
          v_pk_mul_f32 {vr(A0,2)}, {vr(A0,2)}, v[8:9] op_sel_hi:[1,0]
          v_pk_mul_f32 {vr(A0+2,2)}, {vr(A0+2,2)}, v[8:9] op_sel_hi:[1,0]
          v_pk_fma_f32 {vr(A0,2)}, {vr(A1,2)}, v[8:9], {vr(A0,2)} op_sel:[0,1,0] op_sel_hi:[1,1,1]
          v_pk_fma_f32 {vr(A0+2,2)}, {vr(A1+2,2)}, v[8:9], {vr(A0+2,2)} op_sel:[0,1,0] op_sel_hi:[1,1,1]
          v_cvt_pk_bf16_f32 v16, v{A0}, v{A0+1}
          v_cvt_pk_bf16_f32 v17, v{A0+2}, v{A0+3}
          ds_write_b64 v3, v[16:17] offset:{L_OV}
        """)
    A.label("L_bar4")
    tpst(5)
    A("s_mov_b64 exec, -1")
    A(f"s_cmp_eq_u32 s{sTW}, 6")
    A("s_waitcnt lgkmcnt(0)")
    early_exit = (not stamp or late is not None) and not tp and not pclean
    if early_exit: A("s_cbranch_scc1 L_fin")
    A("s_barrier")
    tpst(6)
    if not early_exit: A("s_cbranch_scc1 L_finc" if pclean else "s_cbranch_scc1 L_fin")
    if bmask: setexec(0x000f000f, 0x000f000f)
    for s in range(8):
        if lwo and not (ilv and s < 3):
            for hh in range(2):
                A(f"ds_read_b64_tr_b16 {vr(WA+4*s+2*hh,2)}, v{21 if s == 7 else 20} offset:{s*5120 + hh*640}")
        A(f"ds_read_b128 {vr(OB+4*s,4)}, v6 offset:{L_OV + s*64}")
    if bmask == 1: fullexec()
    for s in range(8):
        A(f"s_waitcnt lgkmcnt({min(15, 3*(7 - s)) if lwo else 7 - s})")
        c = "0" if s == 0 else vr(D, 4)
        A(f"v_mfma_f32_16x16x32_bf16 {vr(D,4)}, {vr(WA+4*s,4)}, {vr(OB+4*s,4)}, {c}")
    tpst(7)
    setexec(0x000f000f, 0x000f000f)
    tag4(D, 18)
    A(f"buffer_store_dwordx4 {vr(D,4)}, v7, {srd(R_WS)}, s{sT3} offen sc1")
    tpst(8)
    if pclean: A(f"s_cmp_eq_u32 s{sW}, 0"); A("s_cbranch_scc1 L_finc")
    if fast and clean:
        A(f"s_cmp_lg_u32 s{sW}, 7"); A("s_cbranch_scc1 L_fin")
        setexec(0xffffffff, 0x00ffffff)
        A(f"buffer_store_dwordx4 {vr(R,4)}, v2, {srd(R_WS)}, s{sT0} offen {cfl2}")
    A("s_branch L_fin")
    A.label("L_poll2_retry")
    if fast:
        A(f"s_add_u32 s{sT0}, s{sT0}, 1"); A(f"s_and_b32 s{sT1}, s{sT0}, {fast}"); A(f"s_cmp_eq_u32 s{sT1}, {fast}"); A(f"s_cselect_b32 s{sT1}, s{sT4}, s{sT2}")
    spin_check("L_poll2", t2s)
    A.label("L_tw4")
    if tprio: A("s_setprio 1")
    A(f"""
      s_cmp_eq_u32 s{sTW}, 6
      s_cbranch_scc1 L_cons
      s_cmp_eq_u32 s{sTW}, 5
      s_cbranch_scc1 L_tw5
      s_waitcnt vmcnt(0)
      s_cmp_eq_u32 s{sTW}, 4
      s_cbranch_scc1 L_bar4
      s_branch {"L_fincb" if pclean else "L_fin"}
      L_tw5:
      s_mov_b64 exec, -1
    """)
    sRO, sRY, XV, XA = sT1, sT0, 8, 3
    if early5:
        sRO, sRY, XV, XA = sT5, sT4, (16 if pclean else R), 3
        A(f"""
          s_cmp_eq_u32 s{sRY}, 0
          s_cbranch_scc1 {"L_fincb" if pclean else "L_finw"}
          {"" if nonce else f"v_mov_b32 v16, s{sEPN}"}
          {"" if nonce else f"v_mov_b32 v17, {WS_EPOCH:#x}"}
          s_waitcnt vmcnt(0)
        """)
        if pclean and pcr:
            A(f"""
              v_and_b32 v20, 3, v0
              v_mul_u32_u24 v20, 23040, v20
              v_bfe_u32 v21, v0, 2, 2
              v_lshl_add_u32 v20, v21, 6, v20
              v_lshrrev_b32 v21, 4, v0
              v_lshl_add_u32 v20, v21, 4, v20
            """)
            setexec(0x0fff0fff, 0x0fff0fff)
            A(f"buffer_store_dwordx4 {vr(R,4)}, v20, {srd(R_WS)}, s40 offen {pclean}")
            fullexec()
        if warm3:
            for i in range(4): A(f"buffer_load_dwordx4 {vr(PB+4*i,4)}, v2, {srd(R_WS)}, s{sRY} offen offset:{i*1024} sc1")
        A("s_barrier")
        if d3: A(f"s_sleep {d3}")
    else:
        if ylay:
            redaddr = f"""s_mul_i32 s{sT1}, s{sC}, 10
              s_add_u32 s{sT1}, s{sT1}, s{sT0}
              s_lshl_b32 s{sT1}, s{sT1}, 6
              v_and_b32 v3, 7, v0
              v_lshlrev_b32 v3, 3, v3"""
        else:
            redaddr = f"""s_and_b32 s{sT1}, s{sT0}, 1
          s_mul_i32 s{sT1}, s{sT1}, 2560
          s_lshr_b32 s{sT2}, s{sT0}, 1
          s_lshl_b32 s{sT2}, s{sT2}, 5
          s_add_u32 s{sT1}, s{sT1}, s{sT2}
          s_mul_i32 s{sT2}, s{sC}, 160
          s_add_u32 s{sT1}, s{sT1}, s{sT2}
          v_bfe_u32 v3, v0, 2, 1
          v_mul_u32_u24 v3, 1280, v3
          v_and_b32 v4, 3, v0
          v_lshl_add_u32 v3, v4, 3, v3"""
        preoutcode = "s_waitcnt vmcnt(1)"
        if preout:
            preoutcode = f"""s_waitcnt vmcnt(0)
              s_mov_b64 exec, 0xff
              buffer_store_dwordx2 v[8:9], v3, {srd(R_OUT)}, s{sT1} offen sc1
              s_mov_b64 exec, -1"""
        if cross: A(f"s_and_b32 s{sT0}, s{sH}, 7"); A(f"s_lshr_b32 s{sT1}, s{sH}, 3"); A(f"s_lshl2_add_u32 s{sT0}, s{sT0}, s{sT1}")
        else: A(f"s_lshl3_add_u32 s{sT0}, s{sHL}, s{sG}")
        A(f"""
          s_cmp_ge_u32 s{sT0}, 10
          s_cbranch_scc1 L_finw
          {redaddr}
          buffer_load_dwordx2 v[8:9], v3, {srd(R_X)}, s{sT1} offen
          s_lshl_b32 s{sT0}, s{sT0}, 12
          s_add_u32 s{sT0}, s{sT0}, s{sT6}
          v_mov_b32 v16, s{sEPN}
          v_mov_b32 v17, {WS_EPOCH:#x}
          {preoutcode}
          s_barrier
        """)
    def ld3(r):
        for i in range(4): A(f"buffer_load_dwordx4 {vr(r+4*i,4)}, v2, {srd(R_WS)}, s{sRY} offen offset:{i*1024} sc1")
    def ck3(r, extra):
        for i in range(4):
            A(f"s_waitcnt vmcnt({3-i+extra})")
            untag(Y + 4*i, r + 4*i, 4)
            if i == 0: A(f"v_or_b32 v14, v{Y}, v{Y+1}")
            else: A(f"v_or3_b32 v14, v14, v{Y+4*i}, v{Y+4*i+1}")
            A(f"v_or3_b32 v14, v14, v{Y+4*i+2}, v{Y+4*i+3}")
        A(f"""
          v_and_b32 v14, 0xff, v14
          v_cmp_ne_u32 vcc, 0, v14
          s_cmp_lg_u64 vcc, 0
        """)
    ld3(PA); A(f"s_sleep {pp3}")
    A.label("L_poll3")
    ld3(PB); ck3(PA, 4); A("s_cbranch_scc0 L_poll3_ok")
    ld3(PA); ck3(PB, 4); A("s_cbranch_scc1 L_poll3_retry")
    A.label("L_poll3_ok")
    st(9)
    if fred:
        assert early5
        for z in (0, 2):
            A(f"v_pk_add_f32 {vr(Y+z,2)}, {vr(Y+z,2)}, {vr(Y+4+z,2)}"); A(f"v_pk_add_f32 {vr(Y+8+z,2)}, {vr(Y+8+z,2)}, {vr(Y+12+z,2)}")
        for z in (0, 2): A(f"v_pk_add_f32 {vr(Y+z,2)}, {vr(Y+z,2)}, {vr(Y+8+z,2)}")
        A(f"v_permlane32_swap_b32 v{Y}, v{Y+2}"); A(f"v_permlane32_swap_b32 v{Y+1}, v{Y+3}")
        A(f"v_pk_add_f32 {vr(Y+4,2)}, {vr(Y,2)}, {vr(Y+2,2)}"); A(f"v_pk_add_f32 {vr(Y+6,2)}, {vr(Y,2)}, {vr(Y+2,2)}")
        A(f"v_permlane16_swap_b32 v{Y+4}, v{Y+6}"); A(f"v_permlane16_swap_b32 v{Y+5}, v{Y+7}")
        A(f"v_pk_add_f32 {vr(Y+4,2)}, {vr(Y+4,2)}, {vr(Y+6,2)}")
        A(f"v_add_f32_dpp v{Y+4}, v{Y+4}, v{Y+4} row_ror:8 {DPPM}"); A(f"v_add_f32_dpp v{Y+5}, v{Y+5}, v{Y+5} row_ror:8 {DPPM}")
        setexec(0xff, 0xff)
        A(f"v_pk_add_f32 {vr(Y+4,2)}, {vr(Y+4,2)}, {vr(XV,2)}")
        A(f"v_cvt_pk_bf16_f32 v8, v{Y+4}, v{Y+5}")
        A(f"buffer_store_dword v8, v{XA}, {srd(R_OUT)}, s{sRO} offen {ofl}")
    else:
        for z in (0, 2):
            A(f"v_pk_add_f32 {vr(Y+z,2)}, {vr(Y+z,2)}, {vr(Y+4+z,2)}"); A(f"v_pk_add_f32 {vr(Y+8+z,2)}, {vr(Y+8+z,2)}, {vr(Y+12+z,2)}")
        for z in (0, 2): A(f"v_pk_add_f32 {vr(Y+z,2)}, {vr(Y+z,2)}, {vr(Y+8+z,2)}")
        A(f"v_lshlrev_b32 v10, 16, v{XV}"); A(f"v_and_b32 v11, s{sHI}, v{XV}")
        for r in range(4): A(f"v_add_f32_dpp v{Y+r}, v{Y+r}, v{Y+r} row_ror:8 {DPPM}")
        A(f"v_lshlrev_b32 v12, 16, v{XV+1}"); A(f"v_and_b32 v13, s{sHI}, v{XV+1}")
        for sw in ("v_permlane16_swap_b32", "v_permlane32_swap_b32"):
            for r in range(4): A(f"v_mov_b32 v{Y+4+r}, v{Y+r}")
            for r in range(4): A(f"{sw} v{Y+r}, v{Y+4+r}")
            for z in (0, 2): A(f"v_pk_add_f32 {vr(Y+z,2)}, {vr(Y+z,2)}, {vr(Y+4+z,2)}")
        for z in (0, 2): A(f"v_pk_add_f32 {vr(Y+z,2)}, {vr(Y+z,2)}, {vr(10+z,2)}")
        A(f"v_cvt_pk_bf16_f32 v8, v{Y}, v{Y+1}"); A(f"v_cvt_pk_bf16_f32 v9, v{Y+2}, v{Y+3}")
        A("s_mov_b64 exec, 0xff")
        A(f"buffer_store_dwordx2 v[8:9], v{XA}, {srd(R_OUT)}, s{sRO} offen {ofl}")
    if not nonce:
        A(f"s_cmp_lg_u32 s2, {999 if noep else 0}"); A("s_cbranch_scc1 L_fin")
        A("s_mov_b64 exec, 1")
        A(f"buffer_store_dword v16, v17, {srd(R_WS)}, 0 offen {ofl}")
    A("s_branch L_fin")
    A.label("L_finw")
    A("s_waitcnt vmcnt(0)")
    def pcl():
        A(f"""
          s_mov_b64 exec, -1
          v_and_b32 v20, 3, v0
          v_mul_u32_u24 v20, 23040, v20
          v_bfe_u32 v21, v0, 2, 2
          v_lshl_add_u32 v20, v21, 6, v20
          v_lshrrev_b32 v21, 4, v0
          v_lshl_add_u32 v20, v21, 4, v20
        """)
        setexec(0x0fff0fff, 0x0fff0fff)
        A(f"buffer_store_dwordx4 {vr(R,4)}, v20, {srd(R_WS)}, s40 offen {pclean}")
    if pclean:
        A("s_branch L_fin")
        A.label("L_fincb")
        A("s_barrier")
        A.label("L_finc")
        if pcs: A(f"s_sleep {pcs}")
        pcl()
    A.label("L_fin")
    if skewm is not None:
        A("s_cmp_lg_u32 s2, 1"); A("s_cbranch_scc1 L_end"); A(f"s_cmp_lg_u32 s{sTW}, 0"); A("s_cbranch_scc1 L_end")
        A(f"s_load_dwordx8 s[84:91], s[{sDBG}:{sDBG+1}], 32 glc"); A("s_waitcnt lgkmcnt(0)")
        A("s_mov_b32 s92, s84")
        for k in range(1, 8): A(f"s_min_u32 s92, s92, s{84+k}")
        if skewm == -1:
            A("s_mov_b32 s93, s84")
            for k in range(1, 8): A(f"s_max_u32 s93, s93, s{84+k}")
            A("s_sub_u32 s69, s93, s92"); A("s_mul_i32 s69, s69, 16")
        elif skewm == -2:
            A("s_mov_b32 s69, 0")
            for k in range(8): A(f"s_sub_u32 s93, s{84+k}, s92"); A("s_add_u32 s69, s69, s93")
            A("s_mul_i32 s69, s69, 2")
        elif skewm == -3: A("s_mov_b32 s69, 0")
        else:
            A(f"s_sub_u32 s69, s{84+skewm}, s92"); A("s_mul_i32 s69, s69, 16")
        A("s_min_u32 s69, s69, 20000"); A("s_add_u32 s69, s69, 6000")
        A.label("L_amp")
        A("s_memrealtime s[100:101]"); A("s_waitcnt lgkmcnt(0)")
        A("s_sub_u32 s100, s100, s92"); A("s_cmp_lt_u32 s100, s69"); A("s_cbranch_scc1 L_amp")
    elif amp:
        i_, j_, wg_, tw_, k_ = amp
        A(f"s_cmp_lg_u32 s2, {wg_}"); A("s_cbranch_scc1 L_end"); A(f"s_cmp_lg_u32 s{sTW}, {tw_}"); A("s_cbranch_scc1 L_end")
        A("s_waitcnt lgkmcnt(0)")
        A(f"s_sub_u32 s69, s{ST0+2*j_}, s{ST0+2*i_}"); A(f"s_min_u32 s69, s69, 5000"); A(f"s_mul_i32 s69, s69, {k_}"); A("s_add_u32 s69, s69, 6000")
        A.label("L_amp")
        A("s_memrealtime s[100:101]"); A("s_waitcnt lgkmcnt(0)")
        A(f"s_sub_u32 s100, s100, s{ST0}"); A(f"s_cmp_lt_u32 s100, s69"); A("s_cbranch_scc1 L_amp")
    elif late is not None and not tp:
        A(f"s_cmp_lg_u32 s2, {max(late,0)}"); A("s_cbranch_scc1 L_end"); A(f"s_cmp_lg_u32 s{sTW}, 0"); A("s_cbranch_scc1 L_end")
        A("s_cmp_eq_u32 s98, 0"); A("s_cbranch_scc1 L_end")
        A.label("L_amp")
        A("s_memrealtime s[100:101]"); A("s_waitcnt lgkmcnt(0)")
        A(f"s_sub_u32 s100, s100, s{ST0}"); A(f"s_cmp_lt_u32 s100, 6000"); A("s_cbranch_scc1 L_amp")
    elif stamp:
        A("s_mov_b64 exec, -1")
        A("s_memrealtime s[100:101]")
        A("s_getreg_b32 s69, hwreg(HW_REG_XCC_ID)")
        A("s_waitcnt lgkmcnt(0)")
        A("v_mov_b32 v2, 0")
        for i in range(11): A(f"v_writelane_b32 v2, s{ST0+2*i}, {i}")
        A("v_writelane_b32 v2, s69, 15"); A(f"v_writelane_b32 v2, s{sSPIN}, 14"); A(f"v_writelane_b32 v2, s{sLIM}, 13")
        A(f"s_lshl_b32 s70, s2, 3"); A(f"s_add_u32 s70, s70, s{sTW}"); A("s_lshl_b32 s70, s70, 6"); A(f"s_add_u32 s70, s70, {WS_STAMP}")
        A("v_lshlrev_b32 v3, 2, v0"); A("s_mov_b64 exec, 0xffff")
        A(f"buffer_store_dword v2, v3, {srd(R_WS)}, s70 offen sc1")
    A.label("L_end")
    A("s_endpgm")
    A.label("L_poll3_retry")
    spin_check("L_poll3", t3s)

    if steal:
        A.label("L_pubsc")
        lds_spin("L_spinp", L_CNT + 4, "ge", 8, 2)
        wgmax(Q + 4)
        A(f"""
          v_lshlrev_b32 v2, 4, v0
          ds_read_b128 {vr(Q,4)}, v2 offset:{L_SC}
          v_mov_b32 v{Q+5}, v{Q+4}
          v_mov_b32 v{Q+6}, v{Q+4}
          v_mov_b32 v{Q+7}, v{Q+4}
          v_mov_b32 v3, 0xffffff00
          s_lshl_b32 s{sT0}, s2, 11
          s_add_u32 s{sT0}, s{sT0}, {WS_X}
          s_setprio 3
          s_waitcnt lgkmcnt(0)
        """)
        tag4(Q, 3); tag4(Q + 4, 3)
        A(f"buffer_store_dwordx4 {vr(Q,4)}, v2, {srd(R_WS)}, s{sT0} offen sc1")
        A("s_mov_b64 exec, 0xff")
        A(f"buffer_store_dwordx4 {vr(Q+4,4)}, v2, {srd(R_WS)}, s{sT0} offen offset:1024 sc1")
        fullexec()
        A("s_branch L_pubsc_done")
        X0 = Q; X1 = Q + 4; X2 = Q + 8
        A.label("L_dec")
        A(f"""
          s_lshl_b32 s{sT3}, s2, 11
          s_add_u32 s{sT3}, s{sT3}, {WS_X}
          s_xor_b32 s{sT4}, s{sT3}, {PX << 11}
          v_lshlrev_b32 v7, 4, v0
          s_setprio 3
        """)
        lds_spin("L_spind", L_CNT + 24, "lg", 0, 2)
        A(f"""
          s_memrealtime s[{sTS}:{sTS+1}]
          s_mov_b64 exec, 0xff
          buffer_load_dwordx4 {vr(X1,4)}, v7, {srd(R_WS)}, s{sT4} offen offset:1152 sc1
          s_waitcnt lgkmcnt(0)
          s_lshl_b32 s{sTS}, s{sTS}, 8
          v_mov_b32 v3, s{sTS}
          v_or_b32 v{X2}, s{TB}, v3
          v_or_b32 v{X2+1}, s{TB+1}, v3
          v_or_b32 v{X2+2}, s{TB+2}, v3
          v_or_b32 v{X2+3}, s{TB+3}, v3
          buffer_store_dwordx4 {vr(X2,4)}, v7, {srd(R_WS)}, s{sT3} offen offset:1152 sc1
          s_waitcnt vmcnt(1)
        """)
        untag(X1, X1, 4)
        A(f"""
          v_or3_b32 v3, v{X1}, v{X1+1}, v{X1+2}
          v_or_b32 v3, v3, v{X1+3}
          v_and_b32 v3, 0xff, v3
          v_cmp_ne_u32 vcc, 0, v3
          v_readfirstlane_b32 s{sT0}, v{X1}
          s_sub_u32 s{sT0}, s{sTS}, s{sT0}
          s_ashr_i32 s{sT0}, s{sT0}, 8
          s_max_i32 s{sT0}, s{sT0}, 0
          s_min_i32 s{sT0}, s{sT0}, 10000
          s_mul_i32 s{sT0}, s{sT0}, {kap}
          s_add_u32 s{sT0}, s{sT0}, {bias}
          s_lshr_b32 s{sT0}, s{sT0}, 12
          s_min_u32 s{sT0}, s{sT0}, {gmax}
          s_cmp_lg_u64 vcc, 0
          s_cselect_b32 s{sT0}, 0, s{sT0}
          s_add_u32 s{sT0}, s{sT0}, 1
          v_mov_b32 v3, s{sT0}
          ds_write_b32 v5, v3 offset:{L_CNT+12}
          v_lshlrev_b32 v3, 8, v3
          v_or_b32 v{X0}, s{TB}, v3
          v_or_b32 v{X0+1}, s{TB+1}, v3
          v_or_b32 v{X0+2}, s{TB+2}, v3
          v_or_b32 v{X0+3}, s{TB+3}, v3
          buffer_store_dwordx4 {vr(X0,4)}, v7, {srd(R_WS)}, s{sT3} offen offset:1280 sc1
          s_mov_b64 exec, -1
        """)
        st(5)
        A("s_branch L_pubsc_done")
        A.label("L_xchg")
        A(f"""
          s_xor_b32 s{sT4}, s2, {PX}
          s_lshl_b32 s{sT4}, s{sT4}, 11
          s_add_u32 s{sT4}, s{sT4}, {WS_X}
          v_lshlrev_b32 v2, 4, v0
          v_and_b32 v7, 0x70, v2
        """)
        A.label("L_pollx")
        A(f"""
          buffer_load_dwordx4 {vr(X0,4)}, v2, {srd(R_WS)}, s{sT4} offen sc1
          buffer_load_dwordx4 {vr(X1,4)}, v7, {srd(R_WS)}, s{sT4} offen offset:1024 sc1
          s_waitcnt vmcnt(0)
        """)
        untag(X0, X0, 8)
        A(f"""
          v_or3_b32 v3, v{X0}, v{X0+1}, v{X0+2}
          v_or3_b32 v3, v3, v{X0+3}, v{X1}
          v_or3_b32 v3, v3, v{X1+1}, v{X1+2}
          v_or_b32 v3, v3, v{X1+3}
          v_and_b32 v3, 0xff, v3
          v_cmp_ne_u32 vcc, 0, v3
          s_cmp_eq_u64 vcc, 0
          s_cbranch_scc1 L_pollx_ok
        """)
        spin_check("L_pollx", 8)
        A.label("L_pollx_ok")
        A(f"ds_write_b128 v2, {vr(X0,4)} offset:{L_SP}")
        lds_spin("L_spinx", L_CNT + 4, "ge", 8, 2)
        wgmax(2)
        A(f"""
          v_max_f32 v2, v2, v{X1}
          v_mov_b32 v4, 1
          s_mov_b64 exec, 1
          ds_write_b32 v5, v2 offset:{L_CNT+20}
          ds_add_u32 v5, v4 offset:{L_CNT+4}
          s_mov_b64 exec, -1
          s_branch L_xchg_done
        """)
        A.label("L_steal")
        st(1)
        A(f"""
          s_and_b32 s{sT0}, s{sW}, 3
          s_lshl_b32 s{sT0}, s{sT0}, 8
          v_and_b32 v10, 0x38, v0
          v_lshlrev_b32 v10, 2, v10
          v_add_u32 v10, s{sT0}, v10
          ds_read_b128 {vr(S,4)}, v10 offset:{L_SP}
          ds_read_b128 {vr(S+4,4)}, v10 offset:{L_SP+16}
          s_xor_b32 s{sT0}, s{sHALF}, 1
          s_lshl_b32 s{sT1}, s{sB}, 5
          s_add_u32 s{sT1}, s{sT1}, s{sH}
          s_lshl3_add_u32 s{sT0}, s{sT1}, s{sT0}
          s_lshl_b32 s{sT0}, s{sT0}, 7
          s_add_u32 s{sT0}, s{sT0}, s{sW}
          s_xor_b32 s{sT1}, s2, {PX}
          s_mul_i32 s{sT1}, s{sT1}, {wgrot}
          s_bfe_u32 s{sROT}, s{sT1}, {0x40000 + rsh:#x}
          s_bitcmp0_b32 s{sT1}, {rsh + 4}
          s_cselect_b32 s{sT1}, 64, 0
          s_add_u32 s{sT0}, s{sT0}, s{sT1}
          s_addk_i32 s{sT0}, {6*128 - 4}
          s_mul_i32 s{sT0}, s{sT0}, 3072
          s_add_u32 s{R_V}, s{sV}, s{sT0}
          s_addc_u32 s{R_V+1}, s{sV+1}, 0
          s_waitcnt lgkmcnt(0)
        """)
        for i in range(8): A(f"v_sub_f32 v{S+i}, v{S+i}, v17")
        for i in range(8): A(f"v_mul_f32 v{S+i}, v19, v{S+i}")
        for i in range(8): A(f"v_exp_f32 v{S+i}, v{S+i}")
        for i in range(8): A(f"v_cvt_pk_bf16_f32 v{S+i}, v{S+i}, v{S+i}")
        A(f"s_cmp_lg_u32 s{sW}, 7"); A("s_cbranch_scc1 L_spint")
        A(f"""
          s_xor_b32 s{sT0}, s2, {PX}
          s_lshl_b32 s{sT0}, s{sT0}, 11
          s_add_u32 s{sT0}, s{sT0}, {WS_X}
          s_mov_b64 exec, 0xff
        """)
        A.label("L_pollg")
        A(f"buffer_load_dwordx4 v[10:13], v2, {srd(R_WS)}, s{sT0} offen offset:1280 sc1")
        A("s_waitcnt vmcnt(0)")
        untag(10, 10, 4)
        A(f"""
          v_or3_b32 v11, v11, v12, v13
          v_or_b32 v11, v11, v10
          v_and_b32 v11, 0xff, v11
          v_cmp_ne_u32 vcc, 0, v11
          s_cmp_eq_u64 vcc, 0
          s_cbranch_scc1 L_pollg_ok
        """)
        spin_check("L_pollg", 6)
        A.label("L_pollg_ok")
        A(f"""
          v_lshrrev_b32 v10, 8, v10
          ds_write_b32 v5, v10 offset:{L_CNT+16}
          s_mov_b64 exec, -1
        """)
        lds_spin("L_spint", L_CNT + 16, "lg", 0, 3, vt=10, sd=sLIM)
        st(2)
        A("s_setprio 0")
        for k in range(gmax - 1, -1, -1):
            A(f"s_cmp_le_u32 s{sLIM}, {k+1}"); A(f"s_cbranch_scc1 L_sti{k}")
            A(f"s_add_u32 s{sT0}, s{sROT}, {15-k}"); A(f"s_and_b32 s{sT0}, s{sT0}, 15"); A(f"s_mulk_i32 s{sT0}, {ITS}")
            for jx in range(3):
                A(f"buffer_load_dwordx4 {vr(P+96+12*k+4*jx,4)}, v{vKV}, {srd(R_V)}, s{sT0} offen offset:{jx*128} {kvfl}")
            A.label(f"L_sti{k}")
        for k in range(gmax - 1, -1, -1):
            A(f"s_cmp_le_u32 s{sLIM}, {k+1}"); A(f"s_cbranch_scc1 L_stp{k}")
            a = AT + 4 * (k & 1)
            mkA(7 - k, a)
            A(f"s_waitcnt vmcnt({3*k})")
            for jx in range(3):
                A(f"v_mfma_f32_16x16x32_bf16 {vr(D+4*jx,4)}, {vr(a,4)}, {vr(P+96+12*k+4*jx,4)}, {vr(D+4*jx,4)}")
            A.label(f"L_stp{k}")
        A("s_branch L_steal_done")

    if rank3:
        for gi in range(3):
            if rank3["thr"][gi] >= 99: continue
            A.label(f"L_rk{gi}")
            B0 = P if gi == 2 else AT
            xcode = f"""s_lshl_b32 s{sT0}, s2, 7
              s_add_u32 s{sT0}, s{sT0}, {WS_X + gi*32768}
              buffer_load_dwordx4 {vr(B0,4)}, v10, {srd(R_WS)}, s{sT0} offen sc1
              s_lshl_b32 s{sT0}, s{sJ}, 10
              s_lshl_b32 s{sT1}, s{sG}, 4
              s_add_u32 s{sT0}, s{sT0}, s{sT1}
              s_add_u32 s{sT0}, s{sT0}, {WS_X + gi*32768}
              buffer_store_dwordx4 {vr(R,4)}, v15, {srd(R_WS)}, s{sT0} offen {rfl}"""
            if rank3.get("pull"):
                xcode = f"""s_lshl_b32 s{sT0}, s{sJ}, 10
                  s_add_u32 s{sT0}, s{sT0}, {WS_X + gi*32768}
                  buffer_load_dwordx4 {vr(B0,4)}, v15, {srd(R_WS)}, s{sT0} offen sc1
                  s_lshl_b32 s{sT0}, s2, 7
                  s_add_u32 s{sT0}, s{sT0}, {WS_X + gi*32768}
                  buffer_store_dwordx4 {vr(R,4)}, v10, {srd(R_WS)}, s{sT0} offen {rfl}"""
            A(f"""
              s_setprio 3
              s_mov_b64 exec, 0xff
              v_lshlrev_b32 v10, 4, v0
              v_lshlrev_b32 v15, 7, v0
              v_mov_b32 v{R}, s{TB}
              v_mov_b32 v{R+1}, s{TB+1}
              v_mov_b32 v{R+2}, s{TB+2}
              v_mov_b32 v{R+3}, s{TB+3}
              {xcode}
              s_waitcnt vmcnt(1)
            """)
            untag(B0, B0, 4)
            A(f"""
              v_or3_b32 v10, v{B0}, v{B0+1}, v{B0+2}
              v_or_b32 v10, v10, v{B0+3}
              v_cmp_eq_u32 s[24:25], 0, v10
              s_bcnt1_i32_b64 s{sT0}, s[24:25]
              s_cmp_ge_u32 s{sT0}, {rank3["lo"][gi]}
              s_cselect_b32 s{sT1}, 1, 2
              s_cmp_ge_u32 s{sT0}, {rank3["thr"][gi]}
              s_cselect_b32 s{sT0}, {rank3["deep"][gi]}, s{sT1}
              v_mov_b32 v10, s{sT0}
              v_mov_b32 v15, 0
              ds_write_b32 v15, v10 offset:{L_CNT+12}
              s_mov_b64 exec, -1
              s_setprio 1
              s_branch {"L_nogate3" if gi == 2 else "L_waitq"}
            """)
    if rank2:
        A.label("L_rank2")
        NP = rank2[0]
        A(f"""
          v_lshrrev_b32 v10, 3, v0
          v_lshlrev_b32 v10, 4, v10
          v_xor_b32 v10, s2, v10
          v_and_b32 v10, 0xf8, v10
          v_and_b32 v15, 7, v0
          v_or_b32 v10, v10, v15
          v_lshlrev_b32 v10, 7, v10
          v_mov_b32 v{R}, s{TB}
          v_mov_b32 v{R+1}, s{TB+1}
          v_mov_b32 v{R+2}, s{TB+2}
          v_mov_b32 v{R+3}, s{TB+3}
          s_lshl_b32 s{sT1}, s2, 7
          s_add_u32 s{sT1}, s{sT1}, {WS_X}
          s_mov_b32 s{sT0}, {WS_X}
        """)
        setexec((1 << min(NP, 32)) - 1, 0)
        A(f"""
          buffer_load_dwordx4 {vr(P,4)}, v10, {srd(R_WS)}, s{sT0} offen {rlf}
          s_mov_b64 exec, 0xff
          buffer_store_dwordx4 {vr(R,4)}, v2, {srd(R_WS)}, s{sT1} offen {rfl}
        """)
        setexec((1 << min(NP, 32)) - 1, 0)
        A("s_waitcnt vmcnt(1)")
        untag(P, P, 4)
        A(f"""
          v_or3_b32 v10, v{P}, v{P+1}, v{P+2}
          v_or_b32 v10, v10, v{P+3}
          v_cmp_eq_u32 s[4:5], 0, v10
          s_bcnt1_i32_b64 s{sT0}, s[4:5]
          s_cmp_ge_u32 s{sT0}, {rank2[3]}
          s_cselect_b32 s{sT1}, 1, 2
          s_cmp_ge_u32 s{sT0}, {rank2[1]}
          s_cselect_b32 s{sT0}, 3, s{sT1}
          v_mov_b32 v10, s{sT0}
          ds_write_b32 v5, v10 offset:{L_CNT+12}
          s_mov_b64 exec, -1
          s_branch L_nogate3
        """)
    if rank:
        A.label("L_rank")
        NP = rank[0]
        A(f"""
          v_lshrrev_b32 v10, 3, v0
          v_lshlrev_b32 v10, 4, v10
          v_xor_b32 v10, s2, v10
          v_and_b32 v10, 0xf8, v10
          v_and_b32 v15, 7, v0
          v_or_b32 v10, v10, v15
          v_lshlrev_b32 v10, 7, v10
          v_mov_b32 v{R}, s{TB}
          v_mov_b32 v{R+1}, s{TB+1}
          v_mov_b32 v{R+2}, s{TB+2}
          v_mov_b32 v{R+3}, s{TB+3}
          s_lshl_b32 s{sT1}, s2, 7
          s_add_u32 s{sT1}, s{sT1}, {WS_X}
          s_setprio 3
        """)
        lds_spin("L_spinr", L_CNT + 24, "lg", 0, 2, vt=15)
        A(f"""
          s_mov_b32 s{sT0}, {WS_X}
          s_mov_b64 exec, {(1 << NP) - 1:#x}
          buffer_load_dwordx4 {vr(AT,4)}, v10, {srd(R_WS)}, s{sT0} offen sc1
          s_mov_b64 exec, 0xff
          buffer_store_dwordx4 {vr(R,4)}, v2, {srd(R_WS)}, s{sT1} offen sc1
          s_mov_b64 exec, {(1 << NP) - 1:#x}
          s_waitcnt vmcnt(1)
        """)
        untag(AT, AT, 4)
        A(f"""
          v_or3_b32 v10, v{AT}, v{AT+1}, v{AT+2}
          v_or_b32 v10, v10, v{AT+3}
          v_cmp_eq_u32 s[4:5], 0, v10
          s_bcnt1_i32_b64 s{sT0}, s[4:5]
          s_cmp_ge_u32 s{sT0}, {rank[1]}
          s_cselect_b32 s{sT0}, 3, 2
          v_mov_b32 v10, s{sT0}
          ds_write_b32 v5, v10 offset:{L_CNT+12}
          s_mov_b64 exec, -1
          s_branch L_rank_done
        """)
    if early5:
        A.label("L_red0")
        A(f"""
          s_mov_b32 s{sRY}, 0
          s_lshl3_add_u32 s{sT0}, s{sHL}, s{sG}
          s_cmp_ge_u32 s{sT0}, 10
          s_cbranch_scc1 L_red0_done
          s_and_b32 s{sT1}, s{sT0}, 1
          s_mul_i32 s{sRO}, s{sT1}, 2560
          s_lshr_b32 s{sT1}, s{sT0}, 1
          s_lshl_b32 s{sT1}, s{sT1}, 5
          s_add_u32 s{sRO}, s{sRO}, s{sT1}
          s_mul_i32 s{sT1}, s{sC}, 160
          s_add_u32 s{sRO}, s{sRO}, s{sT1}
          v_bfe_u32 v{XA}, v0, 2, 1
          v_mul_u32_u24 v{XA}, 1280, v{XA}
          v_and_b32 v10, 3, v0
          v_lshl_add_u32 v{XA}, v10, 3, v{XA}
          s_lshl_b32 s{sT0}, s{sT0}, 12
          s_add_u32 s{sRY}, s{sT0}, s{sT6}
          s_setprio 3
        """)
        if fred:
            A(f"""
              v_lshrrev_b32 v10, 5, v0
              v_lshl_add_u32 v{XA}, v10, 2, v{XA}
            """)
            setexec(0xff, 0xff)
            A(f"buffer_load_dword v10, v{XA}, {srd(R_X)}, s{sRO} offen {xfl}")
            if early5 == 2: A(f"buffer_load_dword v{XV}, v{XA}, {srd(R_OUT)}, s{sRO} offen")
            A("s_waitcnt vmcnt(0)")
            if early5 == 1: A(f"buffer_store_dword v10, v{XA}, {srd(R_OUT)}, s{sRO} offen sc1")
            A(f"v_lshlrev_b32 v{XV}, 16, v10"); A(f"v_and_b32 v{XV+1}, s{sHI}, v10")
        else:
            A("s_mov_b64 exec, 0xff")
            A(f"buffer_load_dwordx2 {vr(XV,2)}, v{XA}, {srd(R_X)}, s{sRO} offen")
            if early5 == 2: A(f"buffer_load_dword v10, v{XA}, {srd(R_OUT)}, s{sRO} offen")
            A("s_waitcnt vmcnt(0)")
            if early5 == 1: A(f"buffer_store_dwordx2 {vr(XV,2)}, v{XA}, {srd(R_OUT)}, s{sRO} offen sc1")
        fullexec()
        if warmy:
            for i in range(4): A(f"buffer_load_dwordx4 {vr(PB+4*i,4)}, v2, {srd(R_WS)}, s{sRY} offen offset:{i*1024} sc1")
        A("s_branch L_red0_done")
    A.label("L_gather")
    G0 = Q
    A(f"""
      s_lshl1_add_u32 s{sT0}, s{sHL}, s{sHALF}
      s_mul_i32 s{sT0}, s{sT0}, 96
      s_mul_i32 s{sT1}, s{sHL}, 768
      v_lshlrev_b32 v3, 4, v0
      v_add_u32 v4, s{sT1}, v3
      s_add_u32 s{sT1}, s{sT0}, {3072 - 48*16}
      s_add_u32 s{sT0}, s{sT0}, {3840 - 54*16}
      s_mov_b32 exec_lo, 0
      s_mov_b32 exec_hi, 0x003f0000
      v_add_u32 v4, s{sT1}, v3
      s_mov_b32 exec_hi, 0x0fc00000
      v_add_u32 v4, s{sT0}, v3
      s_andn2_b32 s{sT0}, s{sH}, 3
      s_add_u32 s{sT0}, s{sT0}, s{sB}
      s_mul_i32 s{sT0}, s{sT0}, {pbs}
      {f's_add_u32 s{sT0}, s{sT0}, 0x300000' if pbs != 23040 else ''}
      s_add_u32 s{sT1}, s{sT0}, 4608
      s_add_u32 s{sT2}, s{sT0}, 9216
      s_add_u32 s{sT3}, s{sT0}, 13824
      s_add_u32 s{sT4}, s{sT0}, 18432
      s_mov_b32 exec_lo, -1
      s_mov_b32 exec_hi, 0x0fffffff
    """)
    A.label("L_poll1")
    for rb, so in enumerate((sT0, sT1, sT2, sT3, sT4)):
        A(f"buffer_load_dwordx4 {vr(G0+4*rb,4)}, v4, {srd(R_WS)}, s{so} offen {gfl}")
    A("s_waitcnt vmcnt(0)")
    untag(G0, G0, 20)
    A(f"v_or_b32 v2, v{G0}, v{G0+1}")
    for k in range(2, 20, 2): A(f"v_or3_b32 v2, v2, v{G0+k}, v{G0+k+1}")
    A(f"""
      v_and_b32 v2, 0xff, v2
      v_cmp_ne_u32 vcc, 0, v2
      s_cmp_eq_u64 vcc, 0
      {"s_branch" if nopart else "s_cbranch_scc1"} L_poll1_ok
    """)
    spin_check("L_poll1", 8)
    A.label("L_poll1_ok")
    st(3)
    fullexec()
    A("v_lshlrev_b32 v2, 3, v0")
    for rb in range(1, 5):
        A(f"v_pk_add_f32 {vr(G0,2)}, {vr(G0,2)}, {vr(G0+4*rb,2)}"); A(f"v_pk_add_f32 {vr(G0+2,2)}, {vr(G0+2,2)}, {vr(G0+4*rb+2,2)}")
    A(f"v_cvt_pk_bf16_f32 v{R}, v{G0}, v{G0+1}"); A(f"v_cvt_pk_bf16_f32 v{R+1}, v{G0+2}, v{G0+3}")
    A("v_mov_b32 v3, 0"); A("v_mov_b32 v4, 1")
    setexec(0xffffffff, 0x0000ffff)
    A(f"ds_write_b64 v2, {vr(R,2)} offset:{L_Q}")
    A("s_mov_b64 exec, 1")
    A(f"ds_write_b32 v3, v4 offset:{L_CNT}")
    fullexec()
    if pretouch:
        Zp = Q
        A(f"""
          v_not_b32 v{Zp}, s{TB}
          v_not_b32 v{Zp+1}, s{TB+1}
          v_not_b32 v{Zp+2}, s{TB+2}
          v_not_b32 v{Zp+3}, s{TB+3}
          v_lshlrev_b32 v2, 4, v0
        """)
        recoff(sT0, sT1)
        A(f"""
          {'buffer_load_dwordx4' if prel else 'buffer_store_dwordx4'} {vr(D+8 if prel else Zp,4)}, v2, {srd(R_WS)}, s{sT0} offen sc1
        """)
        if ylay:
            for second in (False, True):
                A(f"""
                  s_mul_i32 s{sT0}, s{sC}, 5
                  v_lshrrev_b32 v3, 4, v0
                  v_add_u32 v3, s{sT0}, v3
                """)
                if second: A("v_add_u32 v3, 4, v3"); A("s_mov_b64 exec, 0xffff")
                A(f"""
                  v_and_b32 v4, 1, v3
                  v_lshrrev_b32 v3, 1, v3
                  v_lshlrev_b32 v3, 12, v3
                  v_lshl_add_u32 v3, v4, 6, v3
                  v_and_b32 v4, 3, v0
                  v_lshl_add_u32 v3, v4, 4, v3
                  v_bfe_u32 v4, v0, 2, 2
                  v_mul_u32_u24 v4, 81920, v4
                  v_add_u32 v3, v3, v4
                  s_lshl_b32 s{sT0}, s{sH}, 7
                  s_add_u32 s{sT0}, s{sT0}, {WS_YP}
                  {'buffer_load_dwordx4' if prel else 'buffer_store_dwordx4'} {vr(D+8 if prel else Zp,4)}, v3, {srd(R_WS)}, s{sT0} offen sc1
                """)
        else:
            A(f"""
          v_lshrrev_b32 v3, 3, v0
          v_lshlrev_b32 v3, 12, v3
          v_and_b32 v4, 7, v0
          v_lshl_add_u32 v3, v4, 4, v3
          s_mul_i32 s{sT0}, s{sC}, 40960
          s_lshl_b32 s{sT1}, s{sH}, 7
          s_add_u32 s{sT0}, s{sT0}, s{sT1}
          s_add_u32 s{sT0}, s{sT0}, {WS_YP}
          {'buffer_load_dwordx4' if prel else 'buffer_store_dwordx4'} {vr(D+8 if prel else Zp,4)}, v3, {srd(R_WS)}, s{sT0} offen sc1
          s_add_u32 s{sT0}, s{sT0}, 32768
          s_mov_b64 exec, 0xffff
          {'buffer_load_dwordx4' if prel else 'buffer_store_dwordx4'} {vr(D+8 if prel else Zp,4)}, v3, {srd(R_WS)}, s{sT0} offen sc1
        """)
        if (rank or rank2) and rpre:
            A(f"""
              s_lshl_b32 s{sT0}, s2, 7
              s_add_u32 s{sT0}, s{sT0}, {WS_X}
              s_mov_b64 exec, 0xff
              {'buffer_load_dwordx4' if prel else 'buffer_store_dwordx4'} {vr(D+8 if prel else Zp,4)}, v2, {srd(R_WS)}, s{sT0} offen sc1
            """)
        if steal and prex:
            A(f"""
              s_lshl_b32 s{sT0}, s2, 11
              s_add_u32 s{sT0}, s{sT0}, {WS_X}
              {'buffer_load_dwordx4' if prel else 'buffer_store_dwordx4'} {vr(D+8 if prel else Zp,4)}, v2, {srd(R_WS)}, s{sT0} offen offset:1152 sc1
            """)
        fullexec()
    g = AT; u = AT + 4; e = D
    A(f"v_lshlrev_b32 v{g}, 16, v{R}"); A(f"v_and_b32 v{g+1}, s{sHI}, v{R}")
    A(f"v_lshlrev_b32 v{g+2}, 16, v{R+1}"); A(f"v_and_b32 v{g+3}, s{sHI}, v{R+1}")
    for r in range(4): A(f"v_mul_f32 v{e+r}, {LOG2E ^ 0x80000000:#x}, v{g+r}")
    for r in range(4): A(f"v_mov_b32_dpp v{u+r}, v{g+r} row_shl:6 {DPPM}")
    for r in range(4): A(f"v_exp_f32 v{e+r}, v{e+r}")
    for r in range(4): A(f"v_add_f32 v{e+r}, 1.0, v{e+r}")
    for r in range(4): A(f"v_rcp_f32 v{e+r}, v{e+r}")
    for r in range(4): A(f"v_mul_f32 v{e+r}, v{e+r}, v{g+r}")
    A(f"v_cvt_pk_bf16_f32 v{g}, v{e}, v{e+1}"); A(f"v_cvt_pk_bf16_f32 v{g+1}, v{e+2}, v{e+3}")
    A(f"v_lshlrev_b32 v{e}, 16, v{g}"); A(f"v_and_b32 v{e+1}, s{sHI}, v{g}")
    A(f"v_lshlrev_b32 v{e+2}, 16, v{g+1}"); A(f"v_and_b32 v{e+3}, s{sHI}, v{g+1}")
    for r in range(4): A(f"v_mul_f32 v{e+r}, v{e+r}, v{u+r}")
    A(f"v_cvt_pk_bf16_f32 v{g}, v{e}, v{e+1}"); A(f"v_cvt_pk_bf16_f32 v{g+1}, v{e+2}, v{e+3}")
    A(f"v_lshlrev_b32 v{R}, 16, v{g}"); A(f"v_and_b32 v{R+1}, s{sHI}, v{g}")
    A(f"v_lshlrev_b32 v{R+2}, 16, v{g+1}"); A(f"v_and_b32 v{R+3}, s{sHI}, v{g+1}")
    A("s_branch L_waitq")
    A.raw('.section .rodata,"a"'); A.raw(".p2align 6"); A.raw(f".amdhsa_kernel {NAME}_kernel")
    A.raw("  .amdhsa_next_free_vgpr 256\n  .amdhsa_next_free_sgpr 102\n  .amdhsa_accum_offset 256\n  .amdhsa_group_segment_fixed_size 0\n  .amdhsa_kernarg_size 96\n  .amdhsa_user_sgpr_count 2\n  .amdhsa_user_sgpr_kernarg_segment_ptr 1\n  .amdhsa_system_sgpr_workgroup_id_x 1\n  .amdhsa_float_denorm_mode_32 3\n.end_amdhsa_kernel")
    return A.text()

def gen_auto(**kw):
    import subprocess, re
    for padat in range(8 if kw.get("wfirst") else kw.get("early", 12)):
        txt = gen(padat=padat, **kw)
        open("_a.s", "w").write(txt)
        subprocess.run(["clang", "-x", "assembler", "-target", "amdgcn-amd-amdhsa", "-mcpu=gfx950", "-c", "_a.s", "-o", "_a.o"], check=True)
        out = subprocess.run(["llvm-objdump", "-t", "_a.o"], capture_output=True, text=True).stdout
        a = int(re.search(r"^([0-9a-f]+) .* L_pad$", out, re.M).group(1), 16)
        if a >= 0x100: return txt
    return txt

if __name__ == "__main__":
    import json
    cfgs = eval(open(sys.argv[1]).read())
    for k, v in cfgs.items():
        open(f"s/{k}.s", "w").write(gen_auto(**v))
    print(" ".join(f"work/s/{k}.s" for k in cfgs))
    print(json.dumps([f"work/s/{k}.s" for k in cfgs]))
```

```python
import sys; sys.path.insert(0, "work")
from asmlib import Asm
import numpy as np
NAME = "parallel_sum__sliding_block_cached__glu_gated_swiglu__decode"

WS_PART = 0
WS_EPOCH = 0xBF000
WS_YP = 0xC0000
WS_REC = 0x110000
WS_REC2 = 0x280000
WS_X = 0x190000
WS_STAMP = 0x200000
WS_SIZE = 0x400000
L_Q = 0; L_M = 768; L_CNT = 800; L_OV = 896; OVS = 576
L_OP = 3200; OPS = 896
L_WO = L_OP + 16 * OPS
L_XN = L_WO + 38400; XNS = 1296
L_T = L_XN + 4 * XNS + 64
LDS_SIZE = L_T + 3 * 16384
sX, sK, sV, sWQ, sWO, sBX, sW1, sW3, sW2, sOUT, sDBG, sWS = 4, 6, 8, 10, 12, 14, 16, 18, 20, 22, 24, 26
R_K, R_V, R_WS, R_WO, R_W2, R_X, R_OUT, R_W = 28, 32, 36, 40, 44, 48, 52, 52
TB = 56
sW, sG, sJ, sHL, sC, sH, sB, sS = 60, 61, 62, 63, 64, 65, 66, 67
sHI = 68
sT0, sT1, sT2 = 69, 70, 71
sKVO = 72; sEPN = 73; sCLS = 74; sIDX = 75
sT3, sT4, sT5, sT6 = 76, 77, 78, 79
sSPIN = 0
sLIM = 1
sEP = 14
sTW = 15
sROT = 3
ST0 = 80
vKV = 1
Q = 8; S = 20; MK = 36; AT = 40; D = 48; R = 60; P = 64
LOG2E = 0x3fb8aa3b
SCALE = 0x3d93cd3a
assert np.float32(192 ** -0.5).view(np.uint32) == SCALE
INV640 = int(np.float32(1.0 / 640).view(np.uint32))
EPS = int(np.float32(1e-5).view(np.uint32))
DPPM = "row_mask:0xf bank_mask:0xf"
SPINMAX = 200000

def srd(r): return f"s[{r}:{r+3}]"
def vr(a, n): return f"v[{a}:{a+n-1}]"

def gen(stamp=False, prof=False, late=None, padat=3, thr=4, ilv=4, pp3=3, rthr=5, step=8, cw=11, cs=(44, 128), wfl="nt", wofl="nt", swap=False, ydefer=True, yfl="sc1 nt"):
    A = Asm()
    A.raw(f"; @launch grid=(256,1,1) block=(512,1,1) lds={LDS_SIZE}")
    A.raw('.amdgcn_target "amdgcn-amd-amdhsa--gfx950"'); A.raw(".text"); A.raw(f".globl {NAME}_kernel"); A.raw(".p2align 8")
    A.raw(f".type {NAME}_kernel,@function"); A.raw(f"{NAME}_kernel:")
    seen = set()
    for s_ in range(4):
        for w_ in range(4):
            ix = (cw * w_ + cs[0] * (s_ & 1) + cs[1] * (s_ >> 1)) & 255
            for i_ in range(16): seen.add(ix); ix = (ix + step) & 255
    assert len(seen) == 256
    lab = [0]
    full = stamp and not prof and late is None
    def st(i, p=False):
        if stamp and (i == 0 or (p == prof and late is None)): A(f"s_memrealtime s[{ST0+2*i}:{ST0+2*i+1}]")
    def clrst():
        if full:
            for i in range(1, 10): A(f"s_mov_b64 s[{ST0+2*i}:{ST0+2*i+1}], 0")
    def setexec(lo, hi):
        A(f"s_mov_b32 exec_lo, {lo:#x}"); A(f"s_mov_b32 exec_hi, {hi:#x}")
    def fullexec(): A("s_mov_b64 exec, -1")
    def xlane(op, r, t):
        A(f"{op}_dpp v{r}, v{r}, v{r} row_ror:8 {DPPM}")
        A(f"v_mov_b32 v{t}, v{r}"); A(f"v_permlane16_swap_b32 v{r}, v{t}"); A(f"{op} v{r}, v{r}, v{t}")
        A(f"v_mov_b32 v{t}, v{r}"); A(f"v_permlane32_swap_b32 v{r}, v{t}"); A(f"{op} v{r}, v{r}, v{t}")
    def rnd(r, t):
        A(f"v_cvt_pk_bf16_f32 v{t}, v{r}, v{r}"); A(f"v_lshlrev_b32 v{r}, 16, v{t}")
    def spin_check(lbl, sleep):
        if sleep: A(f"s_sleep {sleep}")
        A(f"s_add_u32 s{sSPIN}, s{sSPIN}, 1"); A(f"s_cmp_lt_u32 s{sSPIN}, {SPINMAX}"); A(f"s_cbranch_scc1 {lbl}"); A("s_branch L_fin")
    def lds_spin(name, off, cmp, val, sleep, va=5, vt=2, sd=sT0):
        A.label(name)
        A(f"""
          ds_read_b32 v{vt}, v{va} offset:{off}
          s_waitcnt lgkmcnt(0)
          v_readfirstlane_b32 s{sd}, v{vt}
          s_cmp_{cmp}_u32 s{sd}, {val}
          s_cbranch_scc1 {name}_ok
        """)
        spin_check(name, sleep)
        A.label(name + "_ok")
    def tags():
        lab[0] += 1; q_ = lab[0]
        A(f"s_cmp_lg_u32 s{sEP}, 0"); A(f"s_cbranch_scc1 L_non{q_}_ok")
        A.label(f"L_non{q_}")
        A("v_mov_b32 v2, 0"); A(f"global_load_dword v2, v2, s[{sDBG}:{sDBG+1}] sc1"); A("s_waitcnt vmcnt(0)"); A(f"v_readfirstlane_b32 s{sEP}, v2")
        A(f"s_cmp_lg_u32 s{sEP}, 0"); A(f"s_cbranch_scc1 L_non{q_}_ok")
        spin_check(f"L_non{q_}", 16)
        A.label(f"L_non{q_}_ok")
        A(f"""
          s_mov_b32 s{sEPN}, s{sEP}
          s_and_b32 s{TB}, s{sEPN}, 0xff
          s_bfe_u32 s{TB+1}, s{sEPN}, 0x80008
          s_bfe_u32 s{TB+2}, s{sEPN}, 0x80010
          s_lshr_b32 s{TB+3}, s{sEPN}, 24
        """)
    def tag4(r, m):
        for k in range(4): A(f"v_and_or_b32 v{r+k}, v{r+k}, v{m}, s{TB+k}")
    def untag(dst, src, n):
        for k in range(n): A(f"v_xor_b32 v{dst+k}, s{TB+(k&3)}, v{src+k}")
    def kload(n, r):
        i, jx = divmod(n, 3)
        if jx == 0:
            if r == R_V and n >= 3:
                lab[0] += 1
                if n >= 42: A(f"s_cbranch_vccnz L_pr{lab[0]}")
                else:
                    A("s_waitcnt lgkmcnt(0)"); A(f"v_readfirstlane_b32 s{sCLS}, v10")
                    if n < 39: A(f"ds_read_b32 v10, v5 offset:{L_CNT+12}")
                    A(f"s_cmp_eq_u32 s{sCLS}, 3"); A(f"s_cbranch_scc1 L_pr{lab[0]}")
                if n >= thr: A(f"s_waitcnt vmcnt({thr-1})")
                if n < 42: A(f"s_cmp_lg_u32 s{sCLS}, 2"); A(f"s_cbranch_scc1 L_pr{lab[0]}"); A("s_waitcnt vmcnt(0)")
                A.label(f"L_pr{lab[0]}")
            elif n >= thr: A(f"s_waitcnt vmcnt({thr-1})")
            if n == 0: A(f"s_mov_b32 s{sIDX}, s{sROT}")
            else: A(f"s_add_u32 s{sIDX}, s{sIDX}, {step}"); A(f"s_and_b32 s{sIDX}, s{sIDX}, 255")
            A(f"s_mul_i32 s{sT0}, s{sIDX}, 3072")
        A(f"buffer_load_dwordx4 {vr(P+4*n,4)}, v{vKV}, {srd(r)}, s{sT0} offen offset:{jx*128} nt")
    def idA():
        A(f"""
          v_and_b32 v0, 63, v0
          s_and_b32 s{sG}, s2, 7
          s_lshr_b32 s{sJ}, s2, 3
          s_lshr_b32 s{sHL}, s2, 6
          s_lshl2_add_u32 s{sH}, s{sG}, s{sHL}
          s_and_b32 s{sC}, s{sJ}, 7
        """)
    def idB(old):
        c0 = (-cw * (0 if old else 4)) & 255
        A(f"""
          s_lshr_b32 s{sB}, s{sC}, 2
          s_and_b32 s{sS}, s{sC}, 3
          s_lshl_b32 s{sT0}, s{sB}, 5
          s_add_u32 s{sT0}, s{sT0}, s{sH}
          s_lshl_b32 s{sT0}, s{sT0}, 2
          s_addk_i32 s{sT0}, {3 + (256 if old else 0)}
          s_mul_i32 s{sKVO}, s{sT0}, 786432
          s_mul_i32 s{sROT}, s{sW}, {cw}
          s_add_u32 s{sROT}, s{sROT}, {c0}
          s_bitcmp1_b32 s{sS}, 0
          s_cselect_b32 s{sT2}, {cs[0]}, 0
          s_add_u32 s{sROT}, s{sROT}, s{sT2}
          s_bitcmp1_b32 s{sS}, 1
          s_cselect_b32 s{sT2}, {cs[1]}, 0
          s_add_u32 s{sROT}, s{sROT}, s{sT2}
          s_and_b32 s{sROT}, s{sROT}, 255
          v_lshrrev_b32 v5, 3, v0
          v_and_b32 v6, 7, v0
          v_mul_u32_u24 v{vKV}, 384, v5
          v_lshl_add_u32 v{vKV}, v6, 4, v{vKV}
          s_mov_b32 s{R_K+2}, 786432
          s_mov_b32 s{R_K+3}, 0x20000
        """)
    def setup2():
        A(f"""
          s_add_u32 s{R_V}, s{sV}, s{sKVO}
          s_addc_u32 s{R_V+1}, s{sV+1}, 0
          s_mov_b32 s{sSPIN}, 0
          s_mov_b32 s{sHI}, 0xffff0000
          s_mov_b32 s{R_V+2}, 786432
          s_mov_b32 s{R_V+3}, 0x20000
          s_mov_b32 s{R_WS+2}, {WS_SIZE}
          s_mov_b32 s{R_WS+3}, 0x20000
          s_movk_i32 s{R_X+2}, 5120
          s_mov_b32 s{R_X+3}, 0x20000
          s_movk_i32 s{R_OUT+2}, 5120
          s_mov_b32 s{R_OUT+3}, 0x20000
          s_mov_b64 s[{R_WS}:{R_WS+1}], s[{sWS}:{sWS+1}]
          s_mov_b64 s[{R_X}:{R_X+1}], s[{sX}:{sX+1}]
          s_mov_b64 s[{R_OUT}:{R_OUT+1}], s[{sOUT}:{sOUT+1}]
          s_xor_b32 s{sTW}, s{sW}, 4
        """)
    def kstamp(n):
        if n % 12 == 11: st(1 + n // 12, True)

    st(0)
    A("s_load_dwordx16 s[4:19], s[0:1], 0")
    A("s_load_dwordx8 s[20:27], s[0:1], 64")
    A(f"""
      v_lshrrev_b32 v2, 6, v0
      s_cmpk_ge_u32 s2, 0x100
      s_cbranch_scc1 L_end
      v_readfirstlane_b32 s{sW}, v2
      s_cmp_lt_u32 s{sW}, 4
      s_cbranch_scc1 L_pad
    """)
    idA()
    A(f"""
      v_mul_u32_u24 v2, 26, v0
      v_lshrrev_b32 v2, 8, v2
      v_mul_u32_u24 v3, 10, v2
      v_sub_u32 v3, v0, v3
      v_mul_u32_u24 v2, 1280, v2
      v_lshl_add_u32 v2, v3, 4, v2
      s_lshl2_add_u32 s{sT5}, s{sH}, s{sW}
      s_sub_u32 s{sT5}, s{sT5}, 4
      s_mul_i32 s{sT2}, s{sC}, 160
      s_mul_i32 s{sT4}, s{sT5}, 61440
      s_add_u32 s{sT4}, s{sT4}, s{sT2}
      s_mov_b32 s{R_WO+2}, {47*1280+160}
      s_mov_b32 s{R_WO+3}, 0x20000
      s_mul_i32 s{sT1}, s{sW}, 7680
      s_sub_u32 m0, s{sT1}, {4*7680 - L_WO}
      s_movk_i32 s{sT1}, 960
      s_mov_b32 exec_hi, 0x0fffffff
      s_setprio 2
      s_waitcnt lgkmcnt(0)
      s_add_u32 s{R_WO}, s{sWO}, s{sT4}
      s_addc_u32 s{R_WO+1}, s{sWO+1}, 0
    """)
    for i in range(8):
        if i == 0: so = "0"
        else:
            so = f"s{sT0}"
            A(f"s_add_u32 m0, m0, s{sT1}"); A(f"s_movk_i32 s{sT0}, 7680" if i == 1 else f"s_addk_i32 s{sT0}, 7680")
        A(f"buffer_load_dwordx4 v2, {srd(R_WO)}, {so} offen {wofl} lds")
        if i == padat:
            A("s_branch L_padskip"); A.label("L_pad"); A("s_branch L_old"); A.label("L_padskip")
    A(f"""
      s_mul_i32 s{sT4}, s{sT5}, 15360
      s_add_u32 s{sT4}, s{sT4}, s{sT2}
      s_add_u32 s{R_W2}, s{sW2}, s{sT4}
      s_addc_u32 s{R_W2+1}, s{sW2+1}, 0
      s_mov_b32 s{R_W2+2}, {11*1280+160}
      s_mov_b32 s{R_W2+3}, 0x20000
      s_mul_i32 s{sT0}, s{sW}, 1920
      s_add_u32 m0, s{sT0}, {L_WO + 192*160 - 4*1920}
      s_movk_i32 s{sT0}, 7680
      buffer_load_dwordx4 v2, {srd(R_W2)}, 0 offen {wofl} lds
      s_add_u32 m0, m0, s{sT1}
      buffer_load_dwordx4 v2, {srd(R_W2)}, s{sT0} offen {wofl} lds
      s_mov_b32 exec_hi, -1
    """)
    idB(False)
    A(f"""
      s_add_u32 s{R_K}, s{sK}, s{sKVO}
      s_addc_u32 s{R_K+1}, s{sK+1}, 0
      s_barrier
    """)
    A.label("L_kissue")
    for n in range(48):
        kload(n, R_K); kstamp(n)
    A("s_branch L_kdone")
    A.label("L_old")
    A("s_setprio 3")
    idA(); idB(True)
    A(f"s_memrealtime s[{TB}:{TB+1}]")
    XR = P; F = P + 8; XB = P + 24; AW = P + 40; DD = P + 88; T = P + 100; Z = P + 108
    sU, sRB, sSTR = sT3, sT4, sT5
    A(f"""
      v_mov_b32 v{Z}, 0
      v_mov_b32 v{Z+1}, 0
      v_mov_b32 v{Z+2}, 0
      v_mov_b32 v{Z+3}, 0
      s_mul_i32 s{sT0}, s{sW}, {OVS}
      v_and_b32 v2, 1, v0
      v_lshlrev_b32 v2, 4, v2
      ds_write_b128 v2, {vr(Z,4)} offset:{L_CNT}
      v_add_u32 v2, s{sT0}, v2
      ds_write_b128 v2, {vr(Z,4)} offset:{L_OV+480}
      s_waitcnt lgkmcnt(0)
      s_add_u32 s{R_K}, s{sK}, s{sKVO}
      s_addc_u32 s{R_K+1}, s{sK+1}, 0
      s_or_b32 s{sT0}, s2, s{sW}
      s_cbranch_scc1 L_nonw
      s_mul_i32 s{sT0}, s{TB}, 0x9e3779b1
      s_max_u32 s{sT0}, s{sT0}, 1
      v_mov_b32 v3, s{sT0}
      s_mov_b64 exec, 1
      global_store_dword v{Z}, v3, s[{sDBG}:{sDBG+1}] sc1
      s_mov_b64 exec, -1
      L_nonw:
      s_cmp_ge_u32 s{sJ}, 30
      s_cbranch_scc1 L_p1skip
      s_mul_i32 s{sT0}, s{sW}, 1280
      s_add_u32 s{R_X}, s{sX}, s{sT0}
      s_addc_u32 s{R_X+1}, s{sX+1}, 0
      s_movk_i32 s{R_X+2}, 1280
      s_mov_b32 s{R_X+3}, 0x20000
      v_lshlrev_b32 v7, 5, v0
      s_mul_i32 s{sU}, s{sJ}, 205
      s_lshr_b32 s{sU}, s{sU}, 10
      s_mul_i32 s{sT0}, s{sU}, 5
      s_sub_u32 s{sRB}, s{sJ}, s{sT0}
      s_cmp_eq_u32 s{sU}, 5
      s_cselect_b64 s[{R_W}:{R_W+1}], s[{sW3}:{sW3+1}], s[{sW1}:{sW1+1}]
      s_lshl2_add_u32 s{sT0}, s{sG}, s{sU}
      s_cmp_lt_u32 s{sU}, 4
      s_cselect_b64 s[{R_W}:{R_W+1}], s[{sWQ}:{sWQ+1}], s[{R_W}:{R_W+1}]
      s_cselect_b32 s{sT0}, s{sT0}, s{sG}
      s_cselect_b32 s{sSTR}, 4, 1
      s_mulk_i32 s{sSTR}, 3072
      s_mulk_i32 s{sT0}, 384
      s_lshl2_add_u32 s{sT2}, s{sRB}, s{sW}
      s_mul_i32 s{sT2}, s{sT2}, s{sSTR}
      s_lshl_b32 s{sT2}, s{sT2}, 5
      s_add_u32 s{sT0}, s{sT0}, s{sT2}
      s_add_u32 s{R_W}, s{R_W}, s{sT0}
      s_addc_u32 s{R_W+1}, s{R_W+1}, 0
      s_mul_i32 s{R_W+2}, s{sSTR}, 31
      s_addk_i32 s{R_W+2}, 384
      s_mov_b32 s{R_W+3}, 0x20000
      v_lshlrev_b32 v4, 4, v6
      v_mad_u32_u24 v4, v5, s{sSTR}, v4
      s_lshl_b32 s{sSTR}, s{sSTR}, 3
      s_lshl_b32 s{sT2}, s{sW}, 12
      s_add_u32 m0, s{sT2}, {L_T}
      s_mov_b32 s{sT0}, 0
    """)
    for rg in range(4):
        for sg in range(3):
            A(f"buffer_load_dwordx4 v4, {srd(R_W)}, s{sT0} offen offset:{sg*128} {wfl} lds")
            if sg < 2: A(f"s_add_u32 m0, m0, {16384 - 128}")
        if rg < 3:
            A(f"s_sub_u32 m0, m0, {2*(16384-128) - 1024}"); A(f"s_add_u32 s{sT0}, s{sT0}, s{sSTR}")
        if rg == 1:
            A(f"buffer_load_dwordx4 {vr(XR,4)}, v7, {srd(R_X)}, 0 offen"); A(f"buffer_load_dwordx4 {vr(XR+4,4)}, v7, {srd(R_X)}, 0 offen offset:16")
    A("s_barrier")
    clrst()
    A(f"""
      s_mul_i32 s{sT6}, s{sG}, 92160
      s_mul_i32 s{sT0}, s{sRB}, 4608
      s_add_u32 s{sT6}, s{sT6}, s{sT0}
      s_lshl2_add_u32 s{sT0}, s{sU}, s{sW}
      s_mulk_i32 s{sT0}, 192
      s_add_u32 s{sT6}, s{sT6}, s{sT0}
      v_lshrrev_b32 v4, 4, v0
      v_and_b32 v2, 3, v0
      v_mul_u32_u24 v3, {XNS}, v2
      v_lshl_add_u32 v3, v4, 4, v3
      s_lshl_b32 s{sT0}, s{sRB}, 8
      v_add_u32 v3, s{sT0}, v3
      v_bfe_u32 v12, v0, 2, 2
      v_mul_u32_u24 v11, 23040, v2
      v_lshl_add_u32 v11, v12, 6, v11
      v_lshl_add_u32 v11, v4, 4, v11
      v_lshl_add_u32 v12, v4, 3, v12
      v_lshlrev_b32 v12, 7, v12
      v_lshl_add_u32 v12, v2, 3, v12
      s_mul_i32 s{sT0}, s{sW}, {XNS}
      v_add_u32 v7, s{sT0}, v7
      s_mul_i32 s{sT4}, s{sW}, 3
    """)
    for tt in range(3):
        A(f"""
          s_lshr_b32 s{sT0}, s{sT4}, 2
          s_lshl_b32 s{sT0}, s{sT0}, 14
          s_and_b32 s{sT2}, s{sT4}, 3
          s_lshl_b32 s{sT2}, s{sT2}, 5
          s_add_u32 s{sT0}, s{sT0}, s{sT2}
          s_add_u32 s{sT0}, s{sT0}, {L_T}
          v_add_u32 v{8+tt}, s{sT0}, v12
        """)
        if tt < 2: A(f"s_add_u32 s{sT4}, s{sT4}, 1")
    setup2()
    def red64(r, t):
        for k in (8, 4, 2, 1): A(f"v_add_f32_dpp v{r}, v{r}, v{r} row_ror:{k} {DPPM}")
        A(f"v_mov_b32 v{t}, v{r}"); A(f"v_permlane16_swap_b32 v{r}, v{t}"); A(f"v_add_f32 v{r}, v{r}, v{t}")
        A(f"v_mov_b32 v{t}, v{r}"); A(f"v_permlane32_swap_b32 v{r}, v{t}"); A(f"v_add_f32 v{r}, v{r}, v{t}")
    A(f"v_mov_b32 v{T+2}, 0")
    A("s_waitcnt vmcnt(6)")
    st(1)
    for k in range(8):
        A(f"v_lshlrev_b32 v{F+2*k}, 16, v{XR+k}"); A(f"v_and_b32 v{F+2*k+1}, s{sHI}, v{XR+k}")
    A(f"v_pk_add_f32 {vr(T,2)}, {vr(F,2)}, {vr(F+2,2)}"); A(f"v_pk_add_f32 {vr(T+4,2)}, {vr(F+4,2)}, {vr(F+6,2)}")
    for k in range(4, 8):
        a = T + 4 * (k & 1); A(f"v_pk_add_f32 {vr(a,2)}, {vr(a,2)}, {vr(F+2*k,2)}")
    A(f"v_pk_add_f32 {vr(T,2)}, {vr(T,2)}, {vr(T+4,2)}"); A(f"v_add_f32 v{T}, v{T}, v{T+1}")
    red64(T, T + 1)
    A(f"v_mul_f32 v{T}, {INV640:#x}, v{T}")
    A("s_mov_b32 exec_hi, 0xff")
    for k in range(8):
        A(f"v_pk_add_f32 {vr(AW+2*k,2)}, {vr(F+2*k,2)}, {vr(T,2)} op_sel_hi:[1,0] neg_lo:[0,1] neg_hi:[0,1]")
    A(f"v_pk_mul_f32 {vr(T+4,2)}, {vr(AW,2)}, {vr(AW,2)}"); A(f"v_pk_mul_f32 {vr(T+6,2)}, {vr(AW+2,2)}, {vr(AW+2,2)}")
    for k in range(2, 8):
        a = T + 4 + 2 * (k & 1); A(f"v_pk_fma_f32 {vr(a,2)}, {vr(AW+2*k,2)}, {vr(AW+2*k,2)}, {vr(a,2)}")
    A(f"v_pk_add_f32 {vr(T+4,2)}, {vr(T+4,2)}, {vr(T+6,2)}"); A(f"v_add_f32 v{T+2}, v{T+4}, v{T+5}")
    A("s_mov_b32 exec_hi, -1")
    red64(T + 2, T + 3)
    A(f"v_mul_f32 v{T+2}, {INV640:#x}, v{T+2}")
    rnd(T, T + 1)
    rnd(T + 2, T + 3); A(f"v_add_f32 v{T+2}, {EPS:#x}, v{T+2}"); rnd(T + 2, T + 3)
    A(f"v_sqrt_f32 v{T+2}, v{T+2}"); rnd(T + 2, T + 3); A(f"v_rcp_f32 v{T+2}, v{T+2}")
    for k in range(8):
        A(f"v_pk_add_f32 {vr(F+2*k,2)}, {vr(F+2*k,2)}, {vr(T,2)} op_sel_hi:[1,0] neg_lo:[0,1] neg_hi:[0,1]")
    for k in range(8): A(f"v_cvt_pk_bf16_f32 v{XR+k}, v{F+2*k}, v{F+2*k+1}")
    for k in range(8):
        A(f"v_lshlrev_b32 v{F+2*k}, 16, v{XR+k}"); A(f"v_and_b32 v{F+2*k+1}, s{sHI}, v{XR+k}")
    for k in range(8):
        A(f"v_pk_mul_f32 {vr(F+2*k,2)}, {vr(F+2*k,2)}, {vr(T+2,2)} op_sel_hi:[1,0]")
    for k in range(8): A(f"v_cvt_pk_bf16_f32 v{XR+k}, v{F+2*k}, v{F+2*k+1}")
    A("s_mov_b32 exec_hi, 0xff")
    A(f"ds_write_b128 v7, {vr(XR,4)} offset:{L_XN}"); A(f"ds_write_b128 v7, {vr(XR+4,4)} offset:{L_XN+16}")
    st(2)
    A("s_waitcnt vmcnt(3)"); A("s_mov_b64 exec, 1"); A(f"global_load_dword v4, v{Z}, s[{sDBG}:{sDBG+1}] sc1")
    A(f"""
      v_mov_b32 v2, 1
      s_waitcnt vmcnt(1) lgkmcnt(0)
      s_mov_b64 exec, 1
      ds_add_u32 v{Z}, v2 offset:{L_CNT+8}
      s_mov_b64 exec, -1
    """)
    A("v_mov_b32 v7, 0xffffff00")
    lds_spin("L_spin0", L_CNT + 8, "eq", 4, 1, va=Z)
    for s_ in range(4):
        A(f"ds_read_b128 {vr(XB+4*s_,4)}, v3 offset:{L_XN + s_*64}")
        for tt in range(3):
            for hh in range(2):
                r = AW + (s_ * 3 + tt) * 4 + 2 * hh
                A(f"ds_read_b64_tr_b16 {vr(r,2)}, v{8+tt} offset:{s_*4096 + hh*512}")
    for s_ in range(4):
        A(f"s_waitcnt lgkmcnt({min(14, 7*(3-s_))})")
        for tt in range(3):
            c = "0" if s_ == 0 else vr(DD + 4*tt, 4)
            A(f"v_mfma_f32_16x16x32_bf16 {vr(DD+4*tt,4)}, {vr(AW+(s_*3+tt)*4,4)}, {vr(XB+4*s_,4)}, {c}")
    for tt in range(1, 3):
        m = 0x000f000f << (4 * tt)
        setexec(m, m)
        for r in range(4): A(f"v_mov_b32 v{DD+r}, v{DD+4*tt+r}")
    fullexec(); A("s_waitcnt vmcnt(0)"); A(f"v_readfirstlane_b32 s{sEP}, v4"); tags()
    setexec(0x0fff0fff, 0x0fff0fff)
    for r in range(4): A(f"v_add_u32 v{R+r}, 0x80, v{DD+r}")
    tag4(R, 7)
    A(f"buffer_store_dwordx4 {vr(R,4)}, v11, {srd(R_WS)}, s{sT6} offen sc1 nt")
    fullexec()
    st(3)
    A("s_branch L_p1done")
    A.label("L_p1skip")
    A("s_barrier")
    clrst()
    A.label("L_p1done")
    A("s_barrier")
    A("s_setprio 1")
    A("s_branch L_kissue")
    A.label("L_kdone")
    A(f"s_load_dword s{sEP}, s[{sDBG}:{sDBG+1}], 0")
    A("s_barrier")
    if full:
        A(f"s_cmp_lt_u32 s{sW}, 4"); A("s_cbranch_scc1 L_noclr"); clrst(); A.label("L_noclr")
    st(4)
    setup2()
    A("s_waitcnt lgkmcnt(0)")
    tags()
    A(f"s_cmp_ge_u32 s{sW}, 6"); A("s_cbranch_scc1 L_gather")
    A.label("L_waitq")
    A(f"""
      s_cmp_lt_u32 s{sW}, 4
      s_cselect_b32 s{sT0}, 384, 0
      v_and_b32 v6, 7, v0
      v_lshlrev_b32 v7, 4, v6
      v_add_u32 v7, s{sT0}, v7
    """)
    for i in range(16): A(f"v_mov_b32 v{S+i}, 0")
    A(f"v_and_b32 v3, 1, v0"); A(f"v_lshlrev_b32 v3, 4, v3"); A(f"v_mov_b32 v4, 0xffff"); A(f"v_lshlrev_b32 v3, v3, v4")
    A(f"v_lshrrev_b32 v4, 1, v6")
    for jx in range(4):
        A(f"v_cmp_eq_u32 vcc, {jx}, v4"); A(f"v_cndmask_b32 v{MK+jx}, 0, v3, vcc")
    A("v_mov_b32 v5, 0")
    lds_spin("L_spinq", L_CNT, "eq", 2, 4)
    st(6)
    for jx in range(3): A(f"ds_read_b128 {vr(Q+4*jx,4)}, v7 offset:{L_Q + jx*128}")
    A("s_waitcnt lgkmcnt(0)")
    for k in range(8):
        A(f"s_waitcnt vmcnt({42 - 6*k})")
        for m in range(12):
            for z in range(2):
                i = 2 * k + z
                A(f"v_dot2c_f32_bf16 v{S+i}, v{P + 12*i + m}, v{Q+m}")
    for mode in ("quad_perm:[1,0,3,2]", "quad_perm:[2,3,0,1]", "row_half_mirror"):
        for i in range(16): A(f"v_add_f32_dpp v{S+i}, v{S+i}, v{S+i} {mode} {DPPM}")
    A(f"s_mov_b32 s{sT1}, {SCALE:#x}")
    for k in range(8): A(f"v_cvt_pk_bf16_f32 v{AT+k}, v{S+2*k}, v{S+2*k+1}")
    for k in range(8):
        A(f"v_lshlrev_b32 v{S+2*k}, 16, v{AT+k}"); A(f"v_and_b32 v{S+2*k+1}, s{sHI}, v{AT+k}")
    for i in range(16): A(f"v_mul_f32 v{S+i}, s{sT1}, v{S+i}")
    for k in range(8): A(f"v_cvt_pk_bf16_f32 v{AT+k}, v{S+2*k}, v{S+2*k+1}")
    for k in range(8):
        A(f"v_lshlrev_b32 v{S+2*k}, 16, v{AT+k}"); A(f"v_and_b32 v{S+2*k+1}, s{sHI}, v{AT+k}")
    A(f"v_max3_f32 v2, v{S}, v{S+1}, v{S+2}"); A(f"v_max3_f32 v3, v{S+3}, v{S+4}, v{S+5}")
    A(f"v_max3_f32 v2, v2, v{S+6}, v{S+7}"); A(f"v_max3_f32 v3, v3, v{S+8}, v{S+9}")
    A(f"v_max3_f32 v2, v2, v{S+10}, v{S+11}"); A(f"v_max3_f32 v3, v3, v{S+12}, v{S+13}")
    A(f"v_max3_f32 v2, v2, v{S+14}, v{S+15}"); A(f"v_max_f32 v2, v2, v3")
    xlane("v_max_f32", 2, 3)
    A(f"""
      s_lshl_b32 s{sT0}, s{sW}, 2
      v_mov_b32 v3, s{sT0}
      v_mov_b32 v4, 1
      s_mov_b64 exec, 1
      ds_write_b32 v3, v2 offset:{L_M}
      ds_add_u32 v5, v4 offset:{L_CNT+4}
      s_mov_b64 exec, -1
      s_cmp_lt_u32 s{sW}, 4
      s_cselect_b64 vcc, -1, 0
      s_cselect_b32 s{sT1}, 8, 4
      s_cselect_b32 s{sT2}, 0, 16
    """)
    lds_spin("L_spinm", L_CNT + 4, "ge", f"s{sT1}", 2)
    A(f"""
      v_mov_b32 v3, s{sT2}
      ds_read_b128 {vr(AT,4)}, v3 offset:{L_M}
      s_mov_b32 s{sT1}, {LOG2E:#x}
      s_waitcnt lgkmcnt(0)
      v_max3_f32 v15, v{AT}, v{AT+1}, v{AT+2}
      v_max_f32 v15, v15, v{AT+3}
    """)
    for i in range(16): A(f"v_sub_f32 v{S+i}, v{S+i}, v15")
    for i in range(16): A(f"v_mul_f32 v{S+i}, s{sT1}, v{S+i}")
    for i in range(16): A(f"v_exp_f32 v{S+i}, v{S+i}")
    A(f"v_pk_add_f32 {vr(AT,2)}, {vr(S,2)}, {vr(S+2,2)}"); A(f"v_pk_add_f32 {vr(AT+2,2)}, {vr(S+4,2)}, {vr(S+6,2)}")
    A(f"v_pk_add_f32 {vr(AT+4,2)}, {vr(S+8,2)}, {vr(S+10,2)}"); A(f"v_pk_add_f32 {vr(AT+6,2)}, {vr(S+12,2)}, {vr(S+14,2)}")
    A(f"v_pk_add_f32 {vr(AT,2)}, {vr(AT,2)}, {vr(AT+2,2)}"); A(f"v_pk_add_f32 {vr(AT+4,2)}, {vr(AT+4,2)}, {vr(AT+6,2)}")
    A(f"v_pk_add_f32 {vr(AT,2)}, {vr(AT,2)}, {vr(AT+4,2)}"); A(f"v_add_f32 v14, v{AT}, v{AT+1}")
    for i in range(16): A(f"v_cvt_pk_bf16_f32 v{S+i}, v{S+i}, v{S+i}")
    xlane("v_add_f32", 14, 4)
    A(f"""
      s_mul_i32 s{sT0}, s{sW}, {2*OPS}
      v_mul_u32_u24 v13, {OPS}, v0
      v_add_u32 v13, s{sT0}, v13
      s_and_b32 s{sT1}, s{sW}, 3
      s_cselect_b64 exec, 3, 2
      v_mov_b32 v15, 0
      s_mov_b64 exec, 2
      v_mov_b32 v14, 0
      s_mov_b64 exec, 3
      ds_write_b64 v13, v[14:15] offset:{L_OP + 54*16}
      s_mov_b64 exec, -1
      v_lshrrev_b32 v4, 5, v0
      v_mul_u32_u24 v4, {OPS}, v4
      v_lshl_add_u32 v4, v6, 5, v4
      v_bfe_u32 v7, v0, 4, 1
      v_lshl_add_u32 v4, v7, 4, v4
      v_add_u32 v4, s{sT0}, v4
    """)
    WA = P; OB = P + 32; A0 = P + 64; O = P + 80; Y = P + 80
    PA = P + 140; PB = P + 160
    A(f"""
      s_min_u32 s{sT0}, s{sTW}, 4
      s_lshl_b32 s{sT1}, s{sT0}, 5
      s_add_u32 s{sT1}, s{sT1}, {L_WO}
      v_lshrrev_b32 v16, 4, v0
      v_bfe_u32 v11, v0, 2, 2
      v_and_b32 v3, 3, v0
      v_mul_u32_u24 v11, 160, v11
      v_lshl_add_u32 v11, v3, 3, v11
      v_add_u32 v11, s{sT1}, v11
      v_and_b32 v12, 1, v16
      v_mul_u32_u24 v12, 1280, v12
      v_add_u32 v12, v12, v11
      v_mul_u32_u24 v6, 1280, v16
      v_add_u32 v11, v6, v11
      v_mul_u32_u24 v6, {OVS}, v3
      v_lshl_add_u32 v6, v16, 4, v6
      v_lshrrev_b32 v7, 1, v3
      v_lshlrev_b32 v7, 12, v7
      v_and_b32 v15, 1, v0
      v_lshl_add_u32 v7, v15, 6, v7
      v_lshl_add_u32 v7, v16, 4, v7
      s_mul_i32 s{sT6}, s{sC}, 40960
      s_add_u32 s{sT6}, s{sT6}, {WS_YP}
      s_lshl_b32 s{sT1}, s{sH}, 7
      s_add_u32 s{sT3}, s{sT6}, s{sT1}
      s_lshl_b32 s{sT1}, s{sT0}, 13
      s_add_u32 s{sT3}, s{sT3}, s{sT1}
      s_lshl_b32 s{sT4}, s{sH}, 14
      s_add_u32 s{sT4}, s{sT4}, {WS_REC}
      s_and_b32 s{sT1}, s{sW}, 1
      s_lshl3_add_u32 s{sT1}, s{sT1}, s{sC}
      s_lshl_b32 s{sT1}, s{sT1}, 10
      s_add_u32 s{sT2}, s{sT4}, s{sT1}
      s_min_u32 s{sT5}, s{sTW}, 3
      s_lshl_b32 s{sT1}, s{sT5}, 12
      s_add_u32 s{sT4}, s{sT4}, s{sT1}
      v_lshlrev_b32 v2, 4, v0
      s_mul_i32 s{sT1}, s{sT5}, {OVS}
      v_lshlrev_b32 v3, 3, v0
      v_add_u32 v3, s{sT1}, v3
      v_mov_b32 v13, v3
      s_mov_b32 exec_lo, 0
      s_mov_b32 exec_hi, 0x00380000
      v_add_u32 v13, {2*OVS - 24}, v3
      s_mov_b64 exec, -1
      v_mov_b32 v8, 1
      v_mov_b32 v18, 0xffffff00
      v_mov_b32 v19, {LOG2E:#x}
      s_cmp_eq_u32 s{sTW}, 5
      s_cbranch_scc1 L_red0
    """)
    A.label("L_red0_done")
    A("s_setprio 0"); A("s_cbranch_vccnz L_vissue"); A("s_setprio 1")
    A.label("L_vissue")
    A("s_waitcnt lgkmcnt(0)"); A("s_barrier")
    st(7)
    A(f"ds_read_b32 v10, v5 offset:{L_CNT+12}")
    def pvit(i, cnt):
        a = AT + 4 * (i & 1)
        for jx in range(4): A(f"v_and_b32 v{a+jx}, v{S+i}, v{MK+jx}")
        A("s_nop 0")
        A(f"s_waitcnt vmcnt({cnt})")
        for jx in range(3):
            c = "0" if i == 0 else vr(D + 4*jx, 4)
            A(f"v_mfma_f32_16x16x32_bf16 {vr(D+4*jx,4)}, {vr(a,4)}, {vr(P+12*i+4*jx,4)}, {c}")
    for n in range(48):
        kload(n, R_V)
        if n % 12 == 11: st(5 + n // 12, True)
        if n % 3 == 2 and n // 3 >= ilv and n < 47: pvit(n // 3 - ilv, 3 * ilv)
    if stamp: A(f"s_mov_b32 s{sLIM}, s{sCLS}")
    A("s_cbranch_vccnz L_nogate3"); A("s_barrier")
    A(f"s_cmp_eq_u32 s{sW}, 5"); A("s_cbranch_scc1 L_rank")
    A.label("L_nogate3")
    for s_ in range(8):
        for hh in range(2):
            A(f"ds_read_b64_tr_b16 {vr(WA+4*s_+2*hh,2)}, v{12 if s_ == 7 else 11} offset:{s_*5120 + hh*640}")
    for i in range(15 - ilv, 16): pvit(i, 45 - 3 * i)
    st(8); st(9, True)
    if late is not None:
        A(f"s_load_dword s98, s[{sDBG}:{sDBG+1}], 0"); A("s_waitcnt lgkmcnt(0)")
        A("s_cmp_lg_u32 s98, 0"); A("s_cbranch_scc1 L_nolate")
        A(f"s_cmp_ge_u32 s{sW}, 4"); A("s_cbranch_scc1 L_nolate")
        if late >= 0: A(f"s_cmp_lg_u32 s2, {late}"); A("s_cbranch_scc1 L_nolate")
        A.label("L_late")
        A("s_memrealtime s[100:101]"); A("s_waitcnt lgkmcnt(0)")
        A(f"s_sub_u32 s100, s100, s{ST0}"); A(f"s_cmp_lt_u32 s100, 6000"); A("s_cbranch_scc1 L_late")
        A.label("L_nolate")
    setexec(0x00ff00ff, 0xff00ff00)
    for jx in range(3): A(f"ds_write_b128 v4, {vr(D+4*jx,4)} offset:{L_OP + jx*256}")
    A("s_cbranch_vccz L_ydone")
    A.label("L_bar3")
    A(f"s_cmp_lg_u32 s{sW}, 7")
    setexec(0xffffffff, 0x0040ffff)
    A("s_waitcnt lgkmcnt(0)")
    A("s_barrier")
    A("s_cbranch_scc1 L_notgw")
    def oreduce(row0, fl="sc1", safe=True):
        for k in range(8): A(f"ds_read_b128 {vr(O+4*k,4)}, v2 offset:{L_OP + (row0+k)*OPS}")
        for k in range(0, 8, 2):
            A(f"s_waitcnt lgkmcnt({6 - k})")
            for z in (0, 2): A(f"v_pk_add_f32 {vr(O+4*k+z,2)}, {vr(O+4*k+z,2)}, {vr(O+4*k+4+z,2)}")
            if k:
                for z in (0, 2): A(f"v_pk_add_f32 {vr((R if k == 6 else O)+z,2)}, {vr(O+z,2)}, {vr(O+4*k+z,2)}")
        A("s_mov_b32 exec_hi, 0x00ffffff")
        tag4(R, 18)
        A(f"s_add_u32 s46, s{sT2}, {WS_REC2 - WS_REC}")
        A(f"buffer_store_dwordx4 {vr(R,4)}, v2, {srd(R_WS)}, s46 offen")
        if safe: A(f"buffer_store_dwordx4 {vr(R,4)}, v2, {srd(R_WS)}, s{sT2} offen {fl}")
    oreduce(0)
    st(5)
    A("s_branch L_bar4")
    A.label("L_notgw")
    A("s_mov_b32 exec_hi, 0x00ffffff")
    A(f"s_cmp_gt_u32 s{sTW}, 3"); A("s_cbranch_scc1 L_tw4")
    A.label("L_cons")
    A(f"s_add_u32 s44, s{sT4}, {WS_REC2 - WS_REC}"); A(f"s_mov_b32 s{sT1}, s44"); A(f"s_mov_b32 s{sT0}, 0")
    A.label("L_poll2")
    for i in range(4): A(f"buffer_load_dwordx4 {vr(A0+4*i,4)}, v2, {srd(R_WS)}, s{sT1} offen offset:{i*1024} sc1")
    for i in range(4):
        A(f"s_waitcnt vmcnt({3-i})")
        untag(A0 + 4*i, A0 + 4*i, 4)
        if i == 0: A(f"v_or_b32 v10, v{A0}, v{A0+1}")
        else: A(f"v_or3_b32 v10, v10, v{A0+4*i}, v{A0+4*i+1}")
        A(f"v_or3_b32 v10, v10, v{A0+4*i+2}, v{A0+4*i+3}")
    E = S
    A(f"""
      v_max3_f32 v9, v{A0+1}, v{A0+5}, v{A0+9}
      v_and_b32 v10, 0xff, v10
      v_max_f32 v9, v9, v{A0+13}
      v_cmp_ne_u32 vcc, 0, v10
    """)
    for i in range(4): A(f"v_sub_f32 v{E+i}, v{A0+4*i+1}, v9")
    A("s_cmp_lg_u64 vcc, 0"); A("s_cbranch_scc1 L_poll2_retry")
    st(9)
    A(f"v_pk_mul_f32 {vr(E,2)}, {vr(E,2)}, v[18:19] op_sel:[0,1] op_sel_hi:[1,1]")
    A(f"v_pk_mul_f32 {vr(E+2,2)}, {vr(E+2,2)}, v[18:19] op_sel:[0,1] op_sel_hi:[1,1]")
    for i in range(4): A(f"v_exp_f32 v{E+i}, v{E+i}")
    A(f"""
      v_mul_f32 v9, v{E}, v{A0}
      v_mul_f32 v10, v{E+2}, v{A0+8}
      v_fmac_f32 v9, v{E+1}, v{A0+4}
      v_fmac_f32 v10, v{E+3}, v{A0+12}
      v_readlane_b32 s4, v{E}, 54
      v_add_f32 v9, v9, v10
      v_readlane_b32 s6, v{E+1}, 54
      v_rcp_f32 v9, v9
      v_readlane_b32 s8, v{E+2}, 54
      v_readlane_b32 s10, v{E+3}, 54
      v_readlane_b32 s12, v9, 54
    """)
    OO = S + 4
    for z in (0, 2): A(f"v_pk_mul_f32 {vr(OO+z,2)}, {vr(A0+z,2)}, s[4:5] op_sel_hi:[1,0]")
    for i in range(1, 4):
        for z in (0, 2): A(f"v_pk_fma_f32 {vr(OO+z,2)}, {vr(A0+4*i+z,2)}, s[{4+2*i}:{5+2*i}], {vr(OO+z,2)} op_sel_hi:[1,0,1]")
    for z in (0, 2): A(f"v_pk_mul_f32 {vr(OO+z,2)}, {vr(OO+z,2)}, s[12:13] op_sel_hi:[1,0]")
    A(f"""
      s_mov_b32 exec_hi, 0x0000ffff
      v_cvt_pk_bf16_f32 v16, v{OO}, v{OO+1}
      v_cvt_pk_bf16_f32 v17, v{OO+2}, v{OO+3}
      ds_write_b64 v3, v[16:17] offset:{L_OV}
      s_cmp_gt_u32 s{sTW}, 1
      s_cbranch_scc1 L_bar4
    """)
    setexec(0, 0x003f0000)
    for i in range(4):
        A(f"v_cvt_pk_bf16_f32 v{OO+2*i}, v{A0+4*i}, v{A0+4*i+1}"); A(f"v_cvt_pk_bf16_f32 v{OO+2*i+1}, v{A0+4*i+2}, v{A0+4*i+3}")
        A(f"ds_write_b64 v13, {vr(OO+2*i,2)} offset:{L_OV + 24*i}")
    A.label("L_bar4")
    A("s_mov_b64 exec, -1")
    A(f"s_cmp_eq_u32 s{sTW}, 6")
    A("s_waitcnt lgkmcnt(0)")
    if not stamp or late is not None: A("s_cbranch_scc1 L_fin")
    A("s_barrier")
    if stamp and late is None: A("s_cbranch_scc1 L_fin")
    setexec(0x000f000f, 0x000f000f)
    for s in range(8): A(f"ds_read_b128 {vr(OB+4*s,4)}, v6 offset:{L_OV + s*64}")
    fullexec()
    for s in range(8):
        A(f"s_waitcnt lgkmcnt({7 - s})")
        c = "0" if s == 0 else vr(D, 4)
        A(f"v_mfma_f32_16x16x32_bf16 {vr(D,4)}, {vr(WA+4*s,4)}, {vr(OB+4*s,4)}, {c}")
    setexec(0x000f000f, 0x000f000f)
    tag4(D, 18)
    A(f"buffer_store_dwordx4 {vr(D,4)}, v7, {srd(R_WS)}, s{sT3} offen sc1")
    A(f"s_cmp_lt_u32 s{sW}, 6"); A("s_cbranch_scc1 L_fin")
    setexec(0xffffffff, 0x00ffffff)
    A(f"buffer_store_dwordx4 {vr(R,4)}, v2, {srd(R_WS)}, s46 offen sc1")
    A("s_branch L_fin")
    A.label("L_poll2_retry")
    A(f"s_add_u32 s{sT0}, s{sT0}, 1"); A(f"s_and_b32 s{sT1}, s{sT0}, 63"); A(f"s_cmp_eq_u32 s{sT1}, 63"); A(f"s_cselect_b32 s{sT1}, s{sT4}, s44")
    spin_check("L_poll2", 0)
    sRO, sRY, XV, XA = sT5, sT4, R, 3
    A.label("L_tw4")
    A(f"""
      s_setprio 1
      s_cmp_eq_u32 s{sTW}, 6
      s_cbranch_scc1 L_cons
      s_cmp_eq_u32 s{sTW}, 4
      s_cbranch_scc1 L_bar4
      s_cmp_lg_u32 s{sTW}, 5
      s_cbranch_scc1 L_fin
      s_mov_b64 exec, -1
      s_cmp_eq_u32 s{sRY}, 0
      s_cbranch_scc1 L_fin
      s_barrier
    """)
    def ld3(r):
        for i in range(4): A(f"buffer_load_dwordx4 {vr(r+4*i,4)}, v2, {srd(R_WS)}, s{sRY} offen offset:{i*1024} sc1")
    def ck3(r, extra):
        for i in range(4):
            A(f"s_waitcnt vmcnt({3-i+extra})")
            untag(Y + 4*i, r + 4*i, 4)
            if i == 0: A(f"v_or_b32 v14, v{Y}, v{Y+1}")
            else: A(f"v_or3_b32 v14, v14, v{Y+4*i}, v{Y+4*i+1}")
            A(f"v_or3_b32 v14, v14, v{Y+4*i+2}, v{Y+4*i+3}")
        A(f"""
          v_and_b32 v14, 0xff, v14
          v_cmp_ne_u32 vcc, 0, v14
          s_cmp_lg_u64 vcc, 0
        """)
    ld3(PA); A(f"s_sleep {pp3}")
    A.label("L_poll3")
    ld3(PB); ck3(PA, 4); A("s_cbranch_scc0 L_poll3_ok")
    ld3(PA); ck3(PB, 4); A("s_cbranch_scc1 L_poll3_retry")
    A.label("L_poll3_ok")
    st(9)
    for z in (0, 2):
        A(f"v_pk_add_f32 {vr(Y+z,2)}, {vr(Y+z,2)}, {vr(Y+4+z,2)}"); A(f"v_pk_add_f32 {vr(Y+8+z,2)}, {vr(Y+8+z,2)}, {vr(Y+12+z,2)}")
    for z in (0, 2): A(f"v_pk_add_f32 {vr(Y+z,2)}, {vr(Y+z,2)}, {vr(Y+8+z,2)}")
    A(f"v_permlane32_swap_b32 v{Y}, v{Y+2}"); A(f"v_permlane32_swap_b32 v{Y+1}, v{Y+3}")
    A(f"v_pk_add_f32 {vr(Y+4,2)}, {vr(Y,2)}, {vr(Y+2,2)}"); A(f"v_pk_add_f32 {vr(Y+6,2)}, {vr(Y,2)}, {vr(Y+2,2)}")
    A(f"v_permlane16_swap_b32 v{Y+4}, v{Y+6}"); A(f"v_permlane16_swap_b32 v{Y+5}, v{Y+7}")
    A(f"v_pk_add_f32 {vr(Y+4,2)}, {vr(Y+4,2)}, {vr(Y+6,2)}")
    A(f"v_add_f32_dpp v{Y+4}, v{Y+4}, v{Y+4} row_ror:8 {DPPM}"); A(f"v_add_f32_dpp v{Y+5}, v{Y+5}, v{Y+5} row_ror:8 {DPPM}")
    setexec(0xff, 0xff)
    A(f"v_pk_add_f32 {vr(Y+4,2)}, {vr(Y+4,2)}, {vr(XV,2)}")
    A(f"v_cvt_pk_bf16_f32 v8, v{Y+4}, v{Y+5}")
    A(f"buffer_store_dword v8, v{XA}, {srd(R_OUT)}, s{sRO} offen sc1")
    A.label("L_fin")
    if late is not None:
        A(f"s_cmp_lg_u32 s2, {max(late,0)}"); A("s_cbranch_scc1 L_end"); A(f"s_cmp_lg_u32 s{sTW}, 0"); A("s_cbranch_scc1 L_end")
        A("s_cmp_eq_u32 s98, 0"); A("s_cbranch_scc1 L_end")
        A.label("L_amp")
        A("s_memrealtime s[100:101]"); A("s_waitcnt lgkmcnt(0)")
        A(f"s_sub_u32 s100, s100, s{ST0}"); A(f"s_cmp_lt_u32 s100, 6000"); A("s_cbranch_scc1 L_amp")
    elif stamp:
        A("s_mov_b64 exec, -1")
        A("s_memrealtime s[100:101]")
        A("s_getreg_b32 s69, hwreg(HW_REG_XCC_ID)")
        A("s_waitcnt lgkmcnt(0)")
        A("v_mov_b32 v2, 0")
        for i in range(11): A(f"v_writelane_b32 v2, s{ST0+2*i}, {i}")
        A("v_writelane_b32 v2, s69, 15"); A(f"v_writelane_b32 v2, s{sSPIN}, 14"); A(f"v_writelane_b32 v2, s{sLIM}, 13")
        A(f"s_lshl_b32 s70, s2, 3"); A(f"s_add_u32 s70, s70, s{sTW}"); A("s_lshl_b32 s70, s70, 6"); A(f"s_add_u32 s70, s70, {WS_STAMP}")
        A("v_lshlrev_b32 v3, 2, v0"); A("s_mov_b64 exec, 0xffff")
        A(f"buffer_store_dword v2, v3, {srd(R_WS)}, s70 offen sc1")
    A.label("L_end")
    A("s_endpgm")
    A.label("L_poll3_retry")
    spin_check("L_poll3", 0)
    A.label("L_ydone")
    A(f"""
      s_mov_b64 exec, 1
      ds_add_u32 v5, v8 offset:{L_CNT+28}
      s_cmp_lg_u32 s{sW}, 6
      s_cbranch_scc1 L_bar3
    """)
    lds_spin("L_spiny", L_CNT + 28, "eq", 4, 2, vt=10)
    setexec(0xffffffff, 0x0040ffff)
    oreduce(8, yfl)
    A("s_branch L_bar3")
    A.label("L_rank")
    def cnt():
        untag(P, P, 4)
        A(f"""
          v_or3_b32 v10, v{P}, v{P+1}, v{P+2}
          v_or_b32 v10, v10, v{P+3}
          v_cmp_eq_u32 s[4:5], 0, v10
          s_bcnt1_i32_b64 s{sT0}, s[4:5]
        """)
    A(f"""
      s_mov_b64 exec, 0xff
      v_lshlrev_b32 v15, 7, v0
      v_mov_b32 v{R}, s{TB}
      v_mov_b32 v{R+1}, s{TB+1}
      v_mov_b32 v{R+2}, s{TB+2}
      v_mov_b32 v{R+3}, s{TB+3}
      s_lshl_b32 s45, s{sJ}, 10
      s_add_u32 s45, s45, {WS_X}
      buffer_load_dwordx4 {vr(P,4)}, v15, {srd(R_WS)}, s45 offen sc1
      s_lshl_b32 s{sT0}, s2, 7
      s_add_u32 s{sT0}, s{sT0}, {WS_X}
      buffer_store_dwordx4 {vr(R,4)}, v2, {srd(R_WS)}, s{sT0} offen sc1
      s_waitcnt vmcnt(1)
    """)
    cnt()
    A(f"""
      s_cmp_ge_u32 s{sT0}, 2
      s_cselect_b32 s{sT1}, 1, 2
      s_cmp_ge_u32 s{sT0}, {rthr}
      s_cselect_b32 s{sT0}, 3, s{sT1}
      v_mov_b32 v10, s{sT0}
      ds_write_b32 v5, v10 offset:{L_CNT+12}
      s_cmp_lg_u32 s{sT0}, 2
      s_cbranch_scc1 L_rp_end
      s_mov_b32 s47, 0
    """)
    A.label("L_rp")
    A(f"""
      s_sleep 4
      buffer_load_dwordx4 {vr(P,4)}, v15, {srd(R_WS)}, s45 offen sc1
      s_add_u32 s47, s47, 1
      s_waitcnt vmcnt(0)
    """)
    cnt()
    A(f"""
      s_cmp_ge_u32 s47, 4
      s_cselect_b32 s{sT0}, 64, s{sT0}
      s_cmp_lt_u32 s{sT0}, 5
      s_cbranch_scc1 L_rp
      v_mov_b32 v10, 1
      ds_write_b32 v5, v10 offset:{L_CNT+12}
    """)
    A.label("L_rp_end")
    A("s_mov_b64 exec, -1"); A("s_branch L_nogate3")
    A.label("L_red0")
    A(f"""
      s_mov_b32 s{sRY}, 0
      s_lshl3_add_u32 s{sT0}, s{sHL}, s{sG}
      s_cmp_ge_u32 s{sT0}, 10
      s_cbranch_scc1 L_red0_done
      s_and_b32 s{sT1}, s{sT0}, 1
      s_mul_i32 s{sRO}, s{sT1}, 2560
      s_lshr_b32 s{sT1}, s{sT0}, 1
      s_lshl_b32 s{sT1}, s{sT1}, 5
      s_add_u32 s{sRO}, s{sRO}, s{sT1}
      s_mul_i32 s{sT1}, s{sC}, 160
      s_add_u32 s{sRO}, s{sRO}, s{sT1}
      v_bfe_u32 v{XA}, v0, 2, 1
      v_mul_u32_u24 v{XA}, 1280, v{XA}
      v_and_b32 v10, 3, v0
      v_lshl_add_u32 v{XA}, v10, 3, v{XA}
      s_lshl_b32 s{sT0}, s{sT0}, 12
      s_add_u32 s{sRY}, s{sT0}, s{sT6}
      s_setprio 3
      v_lshrrev_b32 v10, 5, v0
      v_lshl_add_u32 v{XA}, v10, 2, v{XA}
    """)
    setexec(0xff, 0xff)
    A(f"buffer_load_dword v10, v{XA}, {srd(R_X)}, s{sRO} offen")
    A("s_waitcnt vmcnt(0)")
    A(f"buffer_store_dword v10, v{XA}, {srd(R_OUT)}, s{sRO} offen sc1")
    A(f"v_lshlrev_b32 v{XV}, 16, v10"); A(f"v_and_b32 v{XV+1}, s{sHI}, v10")
    fullexec()
    for i in range(4): A(f"buffer_load_dwordx4 {vr(PB+4*i,4)}, v2, {srd(R_WS)}, s{sRY} offen offset:{i*1024} sc1")
    A("s_branch L_red0_done")
    A.label("L_gather")
    G0 = Q
    A(f"""
      s_lshl2_add_u32 s{sT0}, s{sHL}, s{sS}
      s_mul_i32 s{sT0}, s{sT0}, 48
      s_and_b32 s{sT5}, s{sW}, 1
      s_mul_i32 s{sT2}, s{sT5}, 46080
      s_mul_i32 s{sT1}, s{sHL}, 768
      s_add_u32 s{sT1}, s{sT1}, s{sT2}
      v_lshlrev_b32 v3, 4, v0
      v_add_u32 v4, s{sT1}, v3
      v_add_u32 v3, s{sT0}, v3
      s_mov_b32 exec_lo, 0
      s_mov_b32 exec_hi, 0x00070000
      v_add_u32 v4, {3072 - 48*16}, v3
      s_mov_b32 exec_hi, 0x00380000
      v_add_u32 v4, {3072 - 51*16 + 46080}, v3
      s_mov_b32 exec_hi, 0x01c00000
      v_add_u32 v4, {3840 - 54*16}, v3
      s_mov_b32 exec_hi, 0x0e000000
      v_add_u32 v4, {3840 - 57*16 + 46080}, v3
      s_lshl2_add_u32 s{sT0}, s{sG}, s{sB}
      s_mul_i32 s{sT0}, s{sT0}, 23040
      s_add_u32 s{sT1}, s{sT0}, 4608
      s_add_u32 s{sT2}, s{sT0}, 9216
      s_add_u32 s{sT3}, s{sT0}, 13824
      s_add_u32 s{sT4}, s{sT0}, 18432
      s_mov_b32 exec_lo, -1
      s_cmp_eq_u32 s{sT5}, 0
      s_cselect_b32 s{sT6}, 0x0fff0000, 0
      s_or_b32 exec_hi, s{sT6}, 0xffff
    """)
    A.label("L_poll1")
    for rb, so in enumerate((sT0, sT1, sT2, sT3, sT4)):
        A(f"buffer_load_dwordx4 {vr(G0+4*rb,4)}, v4, {srd(R_WS)}, s{so} offen sc1 nt")
    A("s_waitcnt vmcnt(0)")
    untag(G0, G0, 20)
    A(f"v_or_b32 v2, v{G0}, v{G0+1}")
    for k in range(2, 20, 2): A(f"v_or3_b32 v2, v2, v{G0+k}, v{G0+k+1}")
    A(f"""
      v_and_b32 v2, 0xff, v2
      v_cmp_ne_u32 vcc, 0, v2
      s_cmp_eq_u64 vcc, 0
      s_cbranch_scc1 L_poll1_ok
    """)
    spin_check("L_poll1", 8)
    A.label("L_poll1_ok")
    st(3)
    fullexec()
    A(f"s_mulk_i32 s{sT5}, 384"); A("v_lshlrev_b32 v2, 3, v0"); A(f"v_add_u32 v2, s{sT5}, v2")
    for rb in range(1, 5):
        A(f"v_pk_add_f32 {vr(G0,2)}, {vr(G0,2)}, {vr(G0+4*rb,2)}"); A(f"v_pk_add_f32 {vr(G0+2,2)}, {vr(G0+2,2)}, {vr(G0+4*rb+2,2)}")
    A(f"v_cvt_pk_bf16_f32 v{R}, v{G0}, v{G0+1}"); A(f"v_cvt_pk_bf16_f32 v{R+1}, v{G0+2}, v{G0+3}")
    A("v_mov_b32 v3, 0"); A("v_mov_b32 v4, 1")
    setexec(0xffffffff, 0x0000ffff)
    A(f"ds_write_b64 v2, {vr(R,2)} offset:{L_Q}")
    A("s_mov_b64 exec, 1")
    A(f"ds_add_u32 v3, v4 offset:{L_CNT}")
    fullexec()
    g = AT; u = AT + 4; e = D
    A(f"v_lshlrev_b32 v{g}, 16, v{R}"); A(f"v_and_b32 v{g+1}, s{sHI}, v{R}")
    A(f"v_lshlrev_b32 v{g+2}, 16, v{R+1}"); A(f"v_and_b32 v{g+3}, s{sHI}, v{R+1}")
    for r in range(4): A(f"v_mul_f32 v{e+r}, {LOG2E ^ 0x80000000:#x}, v{g+r}")
    for r in range(4): A(f"v_mov_b32_dpp v{u+r}, v{g+r} row_shl:6 {DPPM}")
    for r in range(4): A(f"v_exp_f32 v{e+r}, v{e+r}")
    for r in range(4): A(f"v_add_f32 v{e+r}, 1.0, v{e+r}")
    for r in range(4): A(f"v_rcp_f32 v{e+r}, v{e+r}")
    for r in range(4): A(f"v_mul_f32 v{e+r}, v{e+r}, v{g+r}")
    A(f"v_cvt_pk_bf16_f32 v{g}, v{e}, v{e+1}"); A(f"v_cvt_pk_bf16_f32 v{g+1}, v{e+2}, v{e+3}")
    A(f"v_lshlrev_b32 v{e}, 16, v{g}"); A(f"v_and_b32 v{e+1}, s{sHI}, v{g}")
    A(f"v_lshlrev_b32 v{e+2}, 16, v{g+1}"); A(f"v_and_b32 v{e+3}, s{sHI}, v{g+1}")
    for r in range(4): A(f"v_mul_f32 v{e+r}, v{e+r}, v{u+r}")
    A(f"v_cvt_pk_bf16_f32 v{g}, v{e}, v{e+1}"); A(f"v_cvt_pk_bf16_f32 v{g+1}, v{e+2}, v{e+3}")
    A(f"v_lshlrev_b32 v{R}, 16, v{g}"); A(f"v_and_b32 v{R+1}, s{sHI}, v{g}")
    A(f"v_lshlrev_b32 v{R+2}, 16, v{g+1}"); A(f"v_and_b32 v{R+3}, s{sHI}, v{g+1}")
    A("s_branch L_waitq")
    A.raw('.section .rodata,"a"'); A.raw(".p2align 6"); A.raw(f".amdhsa_kernel {NAME}_kernel")
    A.raw("  .amdhsa_next_free_vgpr 256\n  .amdhsa_next_free_sgpr 102\n  .amdhsa_accum_offset 256\n  .amdhsa_group_segment_fixed_size 0\n  .amdhsa_kernarg_size 96\n  .amdhsa_user_sgpr_count 2\n  .amdhsa_user_sgpr_kernarg_segment_ptr 1\n  .amdhsa_system_sgpr_workgroup_id_x 1\n  .amdhsa_float_denorm_mode_32 3\n.end_amdhsa_kernel")
    return A.text()

def gen_auto(**kw):
    import subprocess, re
    for padat in range(8):
        txt = gen(padat=padat, **kw)
        open("_a.s", "w").write(txt)
        subprocess.run(["clang", "-x", "assembler", "-target", "amdgcn-amd-amdhsa", "-mcpu=gfx950", "-c", "_a.s", "-o", "_a.o"], check=True)
        out = subprocess.run(["llvm-objdump", "-t", "_a.o"], capture_output=True, text=True).stdout
        a = int(re.search(r"^([0-9a-f]+) .* L_pad$", out, re.M).group(1), 16)
        if a >= 0x100: return txt
    return txt

if __name__ == "__main__":
    import json
    cfgs = eval(open(sys.argv[1]).read())
    for k, v in cfgs.items():
        open(f"s/{k}.s", "w").write(gen_auto(**v))
    print(" ".join(f"work/s/{k}.s" for k in cfgs))
    print(json.dumps([f"work/s/{k}.s" for k in cfgs]))
```
